```python
import torch

def _softmax(x, axis=-1):
    return torch.softmax(x, dim=axis)
def _gelu(x):
    return torch.nn.functional.gelu(x, approximate="tanh")
def _silu(x):
    return torch.nn.functional.silu(x)
def _sigmoid(x):
    return torch.sigmoid(x)
def _layernorm(x, axis=-1, eps=1e-5):
    m = x.mean(dim=axis, keepdim=True)
    v = x.var(dim=axis, keepdim=True, unbiased=False)
    return (x - m) / torch.sqrt(v + eps)
def _scatter_add(tgt, idx, src, axis=0):
    return tgt.clone().index_add_(axis, idx, src)
def _segment_sum(src, seg, n):
    out = torch.zeros((n,) + src.shape[1:], dtype=src.dtype)
    return out.index_add_(0, seg, src)
def _pad(x, pw):
    flat = tuple(v for pair in reversed(pw) for v in pair)
    return torch.nn.functional.pad(x, flat)

kernel_name = 'recurrent_scan__sliding_block_cached__dense_activation_squared_relu__prompt'

def setup_inputs():

    _w = (lambda a: (lambda t: t.to(torch.bfloat16) if t.is_floating_point() else t)(torch.as_tensor(a)))
    def _A_setup():
        B, Sq, D = 1, 2048, 640
        Hq, Hkv, Sk, Dh = 32, 32, 2048, 192
        assert Hq % Hkv == 0, (Hq, Hkv)
        return {
            "x": _w((lambda *s: torch.randn(*s, dtype=torch.bfloat16) * 0.05)(B, Sq, D)),
            "k_cache": _w((lambda *s: torch.randn(*s, dtype=torch.bfloat16) * 0.8)(B, Hkv, Sk, Dh)),
            "v_cache": _w((lambda *s: torch.randn(*s, dtype=torch.bfloat16) * 0.2)(B, Hkv, Sk, Dh)),
            "wq": _w((lambda *s: torch.randn(*s, dtype=torch.bfloat16) * 0.8)(D, Hq * Dh) * (D ** -0.5)),
            "wo": _w((lambda *s: torch.randn(*s, dtype=torch.bfloat16) * 0.2)(Hq * Dh, D) * ((Hq * Dh) ** -0.5)),
        }
    _A_in = _A_setup()

    def _B_setup():
        B, S, D, F = 1, 2048, 640, 1536
        return {
            "x": _w((lambda *s: torch.randn(*s, dtype=torch.bfloat16) * 0.05)(B, S, D)),
            "w1": _w((lambda *s: torch.randn(*s, dtype=torch.bfloat16) * 0.1)(D, F)),
            "b1": _w((lambda *s: torch.randn(*s, dtype=torch.bfloat16) * 0.8)(F)),
            "w2": _w((lambda *s: torch.randn(*s, dtype=torch.bfloat16) * 0.1)(F, D)),
            "b2": _w((lambda *s: torch.randn(*s, dtype=torch.bfloat16) * 12.8)(D)),
        }
    _B_in = _B_setup()

    return {
        "A_x": _A_in["x"],
        "A_k_cache": _A_in["k_cache"],
        "A_v_cache": _A_in["v_cache"],
        "A_wq": _A_in["wq"],
        "A_wo": _A_in["wo"],
        "B_x": _B_in["x"],
        "B_w1": _B_in["w1"],
        "B_b1": _B_in["b1"],
        "B_w2": _B_in["w2"],
        "B_b2": _B_in["b2"],
    }

def reference(A_x, A_k_cache, A_v_cache, A_wq, A_wo, B_x, B_w1, B_b1, B_w2, B_b2):
    def _A_ref(x, k_cache, v_cache, wq, wo):
        B, Sq, D = x.shape
        Hq, Dh = 32, 192
        Hkv, Sk = k_cache.shape[1], k_cache.shape[2]
        W = min(4096, max(256, Sk // 4))
        rep = Hq // Hkv
        q = (lambda x, *d: x.permute(*d))((x @ wq).reshape(B, Sq, Hq, Dh), 0, 2, 1, 3)
        k = (lambda x, n, axis: torch.repeat_interleave(x, n, dim=axis))(k_cache[:, :, Sk - W:, :], rep, axis=1)
        v = (lambda x, n, axis: torch.repeat_interleave(x, n, dim=axis))(v_cache[:, :, Sk - W:, :], rep, axis=1)
        scores = torch.einsum("bhqd,bhkd->bhqk", q, k) * (Dh ** -0.5)
        p = _softmax(scores, axis=-1)
        o = torch.einsum("bhqk,bhkd->bhqd", p, v)
        return (lambda x, *d: x.permute(*d))(o, 0, 2, 1, 3).reshape(B, Sq, Hq * Dh) @ wo

    def _B_ref(x, w1, b1, w2, b2):
        h = torch.einsum("bsd,df->bsf", x, w1) + b1
        zero = torch.zeros_like(h)
        r = torch.where(h > zero, h, zero)
        h = r * r
        out = torch.einsum("bsf,fd->bsd", h, w2) + b2
        return out

    x = A_x
    xn = _layernorm(x, axis=-1)
    s = _A_ref(xn, A_k_cache, A_v_cache, A_wq, A_wo)
    g = _silu(_B_ref(xn, B_w1, B_b1, B_w2, B_b2))
    return x + s * g
```

```python
import re
RX = re.compile(r'\b([va])(?:\[(\d+):(\d+)\]|(\d+)\b)')
TRANS = ('v_exp_', 'v_log_', 'v_rcp_', 'v_rsq_', 'v_sqrt_', 'v_sin_', 'v_cos_')

def regs(txt):
    out = []
    for m in RX.finditer(txt):
        c = m.group(1)
        if m.group(4) is not None: out.append((c, int(m.group(4))))
        else: out += [(c, i) for i in range(int(m.group(2)), int(m.group(3)) + 1)]
    return out

def R(c, lo, n=1):
    return f"{c}{lo}" if n == 1 else f"{c}[{lo}:{lo+n-1}]"

class Pass:
    def __init__(self, lg_slack=15, vm_slack=63):
        self.out = []; self.t = 0
        self.vm = []; self.lg = []
        self.pend = {}
        self.mf_w = {}; self.mf_c = {}; self.va_w = {}; self.tr_w = {}; self.st_r = {}
        self.m0_w = -99; self.sg_w = -99; self.nvm = 0; self.nlg = 0; self.vmdone = 0; self.lgdone = 0
        self.tags = {}; self.lg_slack = lg_slack; self.vm_slack = vm_slack
    def raw(self, s, dt=1):
        self.out.append(s); self.t += dt
    def wait(self, vm=None, lg=None):
        p = []
        if vm is not None and vm > self.vmdone:
            n = min(self.nvm - vm, 63, self.vm_slack); p.append(f"vmcnt({n})"); self.vmdone = self.nvm - n
        if lg is not None and lg > self.lgdone:
            n = min(self.nlg - lg, 15, self.lg_slack); p.append(f"lgkmcnt({n})"); self.lgdone = self.nlg - n
        if p: self.raw("s_waitcnt " + " ".join(p))
    def pad(self, need):
        while need > 0:
            n = min(need, 16); self.raw(f"s_nop {n-1}", n); need -= n
    def emit(self, line):
        tag = None
        if ';#' in line:
            line, tag = line.split(';#'); line = line.strip(); tag = tag.strip()
        if line.startswith('@waitvm'):
            ts = [self.tags[x] for x in line.split()[1:] if x in self.tags]
            if ts: self.wait(vm=max(ts))
            return
        if line.startswith('@slack'):
            self.lg_slack = int(line.split()[1]); return
        if line.endswith(':') or line.startswith('.') or line.startswith(';'):
            self.out.append(line); return
        op, _, rest = line.partition(' ')
        ops = [x.strip() for x in rest.split(',')]
        if op == 's_waitcnt':
            m = re.search(r'vmcnt\((\d+)\)', rest)
            if m: self.vmdone = max(self.vmdone, self.nvm - int(m.group(1)))
            m = re.search(r'lgkmcnt\((\d+)\)', rest)
            if m: self.lgdone = max(self.lgdone, self.nlg - int(m.group(1)))
            self.raw(line); return
        if op == 's_nop':
            self.raw(line, int(rest) + 1); return
        if op.startswith('s_'):
            self.raw(line)
            if ops[0] == 'm0':
                assert not getattr(self, 'm0set', False), 'm0 clobber'
                self.m0_w = self.t; self.m0set = True
            return
        mf = op.startswith('v_mfma'); ds = op.startswith('ds_'); vmem = op.startswith(('buffer_', 'global_'))
        valu = op.startswith('v_') and not mf
        dma = vmem and re.search(r'\blds\b', rest) is not None
        dst = []; src = []
        if mf: dst = regs(ops[0]); src = regs(ops[1]) + regs(ops[2]); csrc = regs(ops[3])
        elif (ds and 'read' in op) or (vmem and 'load' in op and not dma) or op.startswith('ds_bperm') or op.startswith('ds_swiz'):
            dst = regs(ops[0]); src = regs(','.join(ops[1:]))
        elif ds or vmem: src = regs(rest)
        elif 'permlane' in op: dst = regs(rest); src = dst
        else:
            dst = regs(ops[0]); src = regs(','.join(ops[1:]))
            if op.startswith(('v_fmac', 'v_dot2c')) or 'dpp' in rest or 'row_' in rest or 'quad_perm' in rest: src = src + dst
        allr = dst + src + (csrc if mf else [])
        wv = max([self.pend[r][1] for r in allr if r in self.pend and self.pend[r][0] == 'vm'], default=None)
        wl = max([self.pend[r][1] for r in allr if r in self.pend and self.pend[r][0] == 'lg'], default=None)
        self.wait(wv, wl)
        need = 0
        def req(tab, rs, n):
            nonlocal need
            for r in rs:
                if r in tab: need = max(need, n - (self.t - tab[r]))
        if mf:
            req(self.va_w, src + csrc, 2); req(self.mf_w, src, 12)
            if csrc != dst: req(self.mf_w, csrc, 10); req(self.mf_w, dst, 10)
        else:
            req(self.mf_w, src + dst, 12)
            if valu:
                req(self.mf_c, dst, 7); req(self.tr_w, src, 1); req(self.st_r, dst, 2)
                if 'permlane' in op or 'dpp' in rest or 'row_' in rest or 'quad_perm' in rest: req(self.va_w, src, 2)
                if 'readfirstlane' in op or 'readlane' in op: req(self.va_w, src, 1)
            else:
                req(self.tr_w, src, 1); req(self.mf_c, dst, 7)
            if dma:
                assert self.m0set, 'm0 unset'
                self.m0set = False
            if dma: need = max(need, 1 - (self.t - self.m0_w))
            if vmem: need = max(need, 5 - (self.t - self.sg_w))
        self.pad(need)
        self.raw(line, 1)
        tw = self.t
        if mf: self.t += 3
        for r in dst: self.pend.pop(r, None)
        if mf:
            for r in dst: self.mf_w[r] = tw + 3
            for r in csrc: self.mf_c[r] = tw + 3
        elif valu:
            for r in dst: self.va_w[r] = tw
            if op.startswith(TRANS):
                for r in dst: self.tr_w[r] = tw
            if ops[0].startswith('s') or ops[0] == 'vcc': self.sg_w = tw
        if ds:
            self.nlg += 1
            for r in dst: self.pend[r] = ('lg', self.nlg)
            if not dst:
                for r in src: self.st_r[r] = tw
        if vmem:
            self.nvm += 1
            for r in dst: self.pend[r] = ('vm', self.nvm)
            if 'store' in op:
                for r in src: self.st_r[r] = tw
            if tag: self.tags[tag] = self.nvm

def run(lines, **kw):
    p = Pass(**kw)
    for l in lines: p.emit(l.strip())
    return p.out

class Sched:
    def __init__(self, mf):
        self.mf = mf; self.s = [[] for _ in mf]
    def at(self, i, items):
        self.s[i] += items if isinstance(items, list) else [items]
    def spread(self, items, lo, hi):
        n = len(items)
        for k, it in enumerate(items):
            self.at(lo + (k * (hi - lo + 1)) // max(n, 1), it)
    def lines(self):
        o = []
        for m, f in zip(self.mf, self.s): o.append(m); o += f
        return o
```

```python
from asmlib import *
import math, struct
NAME = "recurrent_scan__sliding_block_cached__dense_activation_squared_relu__prompt"
XS, OB, HB, PB, FL, TS = 0, 0x400000, 0x1C00000, 0x2200000, 0x4000000, 0x4100000
WSSZ = 0x4200000
OOB = 0x40000000
def f32(x): return "0x%08x" % struct.unpack("<I", struct.pack("<f", x))[0]
MF = "v_mfma_f32_32x32x16_bf16"

def srd(d, ptr, size, add=None):
    o = []
    if add is None: o += [f"s_mov_b32 s{d}, s{ptr}", f"s_mov_b32 s{d+1}, s{ptr+1}"]
    else: o += [f"s_add_u32 s{d}, s{ptr}, {add}", f"s_addc_u32 s{d+1}, s{ptr+1}, 0"]
    return o + [f"s_mov_b32 s{d+2}, {size}", f"s_mov_b32 s{d+3}, 0x20000"]

def bf16r(d, s):
    return [f"v_cvt_pk_bf16_f32 {d}, {s}, {s}", f"v_lshlrev_b32 {d}, 16, {d}"]

def k0(cfg):
    o = []; e = o.append
    e("s_cmp_ge_u32 s2, 256"); e("s_cbranch_scc1 K0END")
    e("s_load_dwordx2 s[4:5], s[0:1], 0"); e("s_load_dwordx2 s[6:7], s[0:1], 96")
    e("v_lshrrev_b32 v1, 6, v0"); e("v_readfirstlane_b32 s3, v1")
    e("v_and_b32 v2, 7, v0"); e("v_lshrrev_b32 v3, 3, v0")
    e("s_lshl_b32 s16, s2, 3"); e("v_add_u32 v4, s16, v2")
    e("v_mul_u32_u24 v5, 1280, v4"); e("v_lshlrev_b32 v6, 4, v3"); e("v_add_u32 v6, v5, v6")
    e(f"s_mov_b32 s17, {OOB}"); e("s_cmp_lt_u32 s3, 2"); e("s_cselect_b32 s17, 0, s17"); e("v_add_u32 v7, s17, v6")
    e("s_waitcnt lgkmcnt(0)")
    o += srd(8, 4, 2048 * 1280) + srd(12, 6, WSSZ)
    e("buffer_load_ushort v8, v5, s[8:11], 0 offen")
    e("buffer_load_dwordx4 v[12:15], v6, s[8:11], 0 offen")
    e("buffer_load_dwordx4 v[16:19], v6, s[8:11], 0 offen offset:512")
    e("buffer_load_dwordx4 v[20:23], v7, s[8:11], 0 offen offset:1024")
    e("s_lshl_b32 s18, s2, 7"); e(f"s_add_u32 s18, s18, {FL}")
    e(f"v_mov_b32 v9, {OOB}"); e("v_lshlrev_b32 v10, 2, v0"); e("v_cmp_gt_u32 vcc, 32, v0")
    e("v_cndmask_b32 v9, v9, v10, vcc"); e("v_mov_b32 v10, 0")
    e("buffer_store_dword v10, v9, s[12:15], s18 offen")
    o += cfg.get('k0_extra', [])
    e("v_lshrrev_b32 v9, 5, v4"); e("v_mul_u32_u24 v9, 40960, v9"); e("v_and_b32 v10, 31, v4")
    e("v_lshlrev_b32 v10, 4, v10"); e("v_add_u32 v9, v9, v10")
    e("v_lshlrev_b32 v10, 9, v3"); e("v_add_u32 v9, v9, v10"); e("v_add_u32 v11, s17, v9")
    e("v_lshlrev_b32 v56, 3, v2"); e("s_lshl_b32 s19, s3, 6"); e("v_add_u32 v57, s19, v56")
    e("v_lshlrev_b32 v8, 16, v8"); e("v_mov_b32 v50, 0"); e("v_mov_b32 v51, 0")
    for c in range(3):
        for i in range(4):
            e(f"v_lshlrev_b32 v{24+c*8+2*i}, 16, v{12+c*4+i}"); e(f"v_and_b32 v{25+c*8+2*i}, 0xffff0000, v{12+c*4+i}")
        if c == 2: e("s_cmp_ge_u32 s3, 2"); e("s_cbranch_scc1 K0SK")
        for i in range(8):
            e(f"v_sub_f32 v52, v{24+c*8+i}, v8"); e("v_add_f32 v50, v50, v52"); e("v_fmac_f32 v51, v52, v52")
    e("K0SK:"); e("s_nop 1")
    for r in (50, 51): e(f"v_add_f32_dpp v{r}, v{r}, v{r} row_ror:8 row_mask:0xf bank_mask:0xf")
    for sw in ("16", "32"):
        e("v_mov_b32 v52, v50"); e("v_mov_b32 v53, v51")
        e(f"v_permlane{sw}_swap_b32 v50, v52"); e(f"v_permlane{sw}_swap_b32 v51, v53")
        e("v_add_f32 v50, v50, v52"); e("v_add_f32 v51, v51, v53")
    e("ds_write_b64 v57, v[50:51]"); e("s_waitcnt lgkmcnt(0)"); e("s_barrier")
    for w in range(4): e(f"ds_read_b64 v[{58+2*w}:{59+2*w}], v56 offset:{64*w}")
    e("v_add_f32 v50, v58, v60"); e("v_add_f32 v51, v59, v61"); e("v_add_f32 v52, v62, v64"); e("v_add_f32 v53, v63, v65")
    e("v_add_f32 v50, v50, v52"); e("v_add_f32 v51, v51, v53")
    e(f"v_mul_f32 v50, {f32(1/640)}, v50"); e(f"v_mul_f32 v51, {f32(1/640)}, v51")
    e("v_fma_f32 v51, -v50, v50, v51"); e("v_max_f32 v51, 0, v51"); e("v_add_f32 v50, v50, v8")
    o += bf16r("v50", "v50") + bf16r("v51", "v51")
    e(f"v_add_f32 v51, {f32(1e-5)}, v51"); o += bf16r("v51", "v51")
    e("v_sqrt_f32 v51, v51"); o += bf16r("v51", "v51"); e("v_rcp_f32 v51, v51")
    for c in range(3):
        for i in range(4):
            a, b = 24 + c * 8 + 2 * i, 25 + c * 8 + 2 * i
            e(f"v_sub_f32 v{a}, v{a}, v50"); e(f"v_sub_f32 v{b}, v{b}, v50")
            e(f"v_cvt_pk_bf16_f32 v52, v{a}, v{b}")
            e(f"v_lshlrev_b32 v{a}, 16, v52"); e(f"v_and_b32 v{b}, 0xffff0000, v52")
            e(f"v_mul_f32 v{a}, v{a}, v51"); e(f"v_mul_f32 v{b}, v{b}, v51")
            e(f"v_cvt_pk_bf16_f32 v{12+c*4+i}, v{a}, v{b}")
        e(f"s_mov_b32 s20, {c*16384}")
        e(f"buffer_store_dwordx4 v[{12+c*4}:{15+c*4}], v{11 if c == 2 else 9}, s[12:15], s20 offen")
    e("s_waitcnt vmcnt(0)"); e("K0END:"); e("s_endpgm")
    return run(o)
```

```python
from gen1 import *
PB = 0x2200000
FL2 = FL
KL, VL = 65536, 65536 + 49152
QS = 192 ** -0.5 * math.log2(math.e)

def stamp(cfg, i):
    return [f"s_mem{('', 'real')[cfg['ts']-1]}time s[{64+2*i}:{65+2*i}]"] if cfg.get('ts') else []

def prologue(cfg):
    o = []; e = o.append
    e("s_cmp_ge_u32 s2, 256"); e("s_cbranch_scc1 K1END")
    if cfg.get('ts'): e("s_memrealtime s[100:101]")
    e("s_load_dwordx16 s[64:79], s[0:1], 0"); e("s_load_dwordx8 s[80:87], s[0:1], 64"); e("s_load_dwordx2 s[88:89], s[0:1], 96")
    e("v_lshrrev_b32 v1, 6, v0"); e("v_readfirstlane_b32 s3, v1"); e("v_and_b32 v0, 63, v0")
    e("s_and_b32 s4, s2, 7"); e("s_bfe_u32 s5, s2, 0x20003"); e("s_lshr_b32 s6, s2, 5")
    e("s_lshl_b32 s7, s4, 2"); e("s_add_u32 s7, s7, s5"); e("s_and_b32 s58, s5, 1")
    e("s_mul_i32 s59, s7, 384"); e("s_lshl_b32 s60, s3, 7"); e("s_add_u32 s59, s59, s60")
    e("s_lshr_b32 s60, s7, 1"); e("s_mul_i32 s60, s60, 192"); e("s_lshl_b32 s61, s58, 6"); e("s_add_u32 s61, s60, s61")
    e("s_mul_i32 s62, s5, 5"); e("s_mul_i32 s63, s6, 5"); e("s_lshr_b32 s63, s63, 1"); e("s_add_u32 s62, s62, s63")
    e("s_sub_u32 s63, s62, 20"); e("s_cmp_ge_u32 s62, 20"); e("s_cselect_b32 s62, s63, s62")
    if cfg.get('norot'): e("s_mov_b32 s62, 0")
    e("s_lshl_b32 s48, s62, 11"); e("s_lshl_b32 s47, s3, 12"); e("s_lshl_b32 s51, s3, 10")
    e("s_waitcnt lgkmcnt(0)")
    e("s_cmp_eq_u32 s3, 3")
    e("s_cselect_b32 s8, s76, s70"); e("s_cselect_b32 s9, s77, s71"); e("s_cselect_b32 s59, s61, s59")
    e(f"s_cselect_b32 s10, {640*3072}, {640*12288}") if False else None
    e(f"s_mov_b32 s10, {640*12288}"); e(f"s_cselect_b32 s10, {640*3072}, s10")
    e("s_mov_b32 s44, 12288"); e("s_cselect_b32 s44, 3072, s44"); e("s_cselect_b32 s63, s58, 0")
    e("s_mov_b32 s11, 0x20000"); e("s_mov_b32 s46, s10")
    o += srd(12, 88, WSSZ)
    e("v_lshrrev_b32 v18, 3, v0"); e("v_and_b32 v19, 7, v0"); e("v_lshlrev_b32 v20, 1, v18"); e("v_and_b32 v20, 4, v20")
    e("v_xor_b32 v20, v19, v20"); e("s_lshl_b32 s63, s63, 2"); e("v_xor_b32 v21, s63, v20")
    e("v_mul_lo_u32 v1, v18, s44"); e("v_lshlrev_b32 v21, 4, v21"); e("v_add3_u32 v1, v1, v21, s59")
    e("s_lshl_b32 s44, s44, 3"); e("s_mul_i32 s45, s44, s62"); e("s_lshl_b32 s45, s45, 2")
    e("s_lshl_b32 s90, s6, 3"); e("s_lshl_b32 s91, s3, 1"); e("s_add_u32 s90, s90, s91")
    e("s_add_u32 s91, s90, s58"); e("s_xor_b32 s92, s91, 1")
    e("v_lshlrev_b32 v30, 4, v0")
    e("s_mul_i32 s63, s91, 40960"); e("v_add_u32 v4, s63, v30"); e("s_mul_i32 s63, s92, 40960"); e("v_add_u32 v5, s63, v30")
    return o

def wdma(b):
    g = []
    for i in range(4):
        g.append([f"s_add_u32 m0, s47, {(b % 4) * 16384 + i * 1024}"])
        it = [f"buffer_load_dwordx4 v1, s[8:11], s45 offen lds ;#W{b}", "s_add_u32 s45, s45, s44"]
        if i == 3: it += ["s_cmp_ge_u32 s45, s46", "s_cselect_b32 s45, 0, s45"]
        g.append(it)
    return g

def xload(s):
    g = [[f"buffer_load_dwordx4 {R('a', 64 + (s % 8) * 8 + 4 * r, 4)}, v{4+r}, s[12:15], s48 offen offset:{(s & 1) * 1024}"] for r in range(2)]
    if s & 1: g[1] += ["s_add_u32 s48, s48, 2048", "s_cmp_ge_u32 s48, 40960", "s_cselect_b32 s48, 0, s48"]
    return g

def wread(s):
    b, st = s >> 1, s & 1
    return [f"ds_read_b64_tr_b16 {R('a', (s & 1) * 32 + g * 4 + 2 * e_, 2)}, v{2 + (g & 1)} offset:{(b % 4) * 16384 + (g >> 1) * 4096 + st * 2048 + e_ * 512}"
            for g in range(8) for e_ in range(2)]

def kvdma(kind, i):
    base, v, sr, so = (KL, 6, 16, 49) if kind == 'K' else (VL, 7, 20, 50)
    g = []
    for sg in range(3):
        g.append([f"s_add_u32 m0, s51, {base + (i % 4) * 12288 + sg * 3968}"])
        it = [f"buffer_load_dwordx4 v{v}, s[{sr}:{sr+3}], s{so} offen offset:{128*sg} lds ;#{kind}{i}"]
        if sg == 2: it += [f"s_add_u32 s{so}, s{so}, 12288", f"s_cmp_ge_u32 s{so}, {16*12288}", f"s_cselect_b32 s{so}, 0, s{so}"]
        g.append(it)
    return g

def flat(g): return [x for it in g for x in (it if isinstance(it, list) else [it])]

def setup2():
    o = []; e = o.append
    o += srd(32, 78, 3072)
    e("v_lshrrev_b32 v22, 5, v0"); e("v_lshlrev_b32 v23, 4, v22")
    e("s_lshl_b32 s63, s58, 7"); e("s_add_u32 s63, s63, s60"); e("s_add_u32 s93, s60, 64")
    e("buffer_load_dwordx4 v[32:35], v23, s[32:35], s63 offen"); e("buffer_load_dwordx4 v[36:39], v23, s[32:35], s63 offen offset:32")
    e("buffer_load_dwordx4 v[40:43], v23, s[32:35], s93 offen"); e("buffer_load_dwordx4 v[44:47], v23, s[32:35], s93 offen offset:32")
    e("s_mul_i32 s63, s7, 786432"); e(f"s_add_u32 s63, s63, {1536*384}")
    o += srd(16, 66, 512 * 384, "s63") + srd(20, 68, 512 * 384, "s63")
    e("s_mul_i32 s63, s5, 320")
    o += srd(24, 72, 6144 * 1280 - 960, "s63") + srd(28, 80, 1536 * 1280 - 960, "s63")
    o += srd(36, 64, 2048 * 1280) + srd(40, 84, 2048 * 1280) + srd(96, 82, 1280)
    e("s_mul_i32 s49, s6, 24576"); e("s_mov_b32 s50, s49")
    e(f"s_mov_b32 s52, {f32(QS)}"); e("s_mov_b32 s53, s52"); e(f"s_mov_b32 s54, {f32(2.0**24)}")
    e("s_mov_b32 s56, 4096"); e("s_mov_b32 s57, 8192")
    e("v_bfe_u32 v24, v0, 2, 2"); e("v_bfe_u32 v25, v0, 4, 1")
    e("v_and_b32 v26, 1, v0"); e("v_bfe_u32 v27, v0, 1, 1")
    e("v_lshl_add_u32 v26, v25, 1, v26"); e("v_lshlrev_b32 v26, 4, v26"); e("v_lshl_add_u32 v26, v27, 3, v26")
    e("v_lshl_add_u32 v28, v22, 3, v24"); e("v_mul_u32_u24 v31, 320, v28"); e("v_add_u32 v31, v31, v26")
    e("v_bfe_u32 v27, v0, 3, 1"); e("v_lshl_add_u32 v26, v27, 6, v26")
    e("v_lshl_add_u32 v2, v28, 7, v26"); e("v_xor_b32 v3, 64, v2")
    e("v_lshl_add_u32 v28, v22, 2, v24"); e("v_lshl_add_u32 v12, v28, 7, v26"); e(f"v_add_u32 v12, {VL}, v12"); e("v_xor_b32 v13, 64, v12")
    e("v_and_b32 v24, 31, v0"); e("v_bfe_u32 v25, v0, 1, 3"); e("v_xor_b32 v25, v25, v22")
    e("v_lshlrev_b32 v25, 4, v25"); e("v_lshl_add_u32 v8, v24, 7, v25"); e(f"v_add_u32 v8, {KL}, v8")
    e("v_xor_b32 v9, 32, v8"); e("v_xor_b32 v10, 64, v8"); e("v_xor_b32 v11, 0x60, v8")
    e("s_lshl_b32 s63, s3, 3"); e("v_add_u32 v24, s63, v18"); e("v_mul_u32_u24 v25, 384, v24")
    e("v_lshl_add_u32 v7, v20, 4, v25"); e("v_bfe_u32 v24, v24, 1, 3"); e("v_xor_b32 v24, v24, v19"); e("v_lshl_add_u32 v6, v24, 4, v25")
    for r, sg in ((0, 91), (1, 92)):
        e(f"s_mul_i32 s63, s{sg}, {384*1024}"); e(f"s_add_u32 s63, s63, {OB}"); e(f"v_add_u32 v{26+r}, s63, v30")
        e(f"s_mul_i32 s63, s{sg}, {96*1024}"); e("s_lshl_b32 s93, s60, 5"); e("s_add_u32 s63, s63, s93"); e(f"s_add_u32 s63, s63, {HB}")
        e(f"v_add_u32 v{28+r}, s63, v30")
    e("s_lshl_b32 s94, s58, 12")
    for tl, src in ((0, 32), (1, 32), (2, 40)):
        for i in range(8):
            e(f"v_lshlrev_b32 v24, 16, v{src+i}"); e(f"v_and_b32 v25, 0xffff0000, v{src+i}")
            e(f"v_accvgpr_write_b32 a{192+tl*16+2*i}, v24"); e(f"v_accvgpr_write_b32 a{193+tl*16+2*i}, v25")
    return o

XD = 6
def p1(cfg):
    o = []
    o += flat(wdma(0)) + flat(xload(0)) + flat(xload(1)) + flat(wdma(1))
    for s in range(2, XD): o += flat(xload(s))
    o += setup2() + flat(wdma(2)) + stamp(cfg, 0)
    o += ["@waitvm W0", "s_barrier"] + wread(0) + ["@slack 6"]
    kv = kvdma('K', 0) + kvdma('K', 1) + kvdma('V', 0) + kvdma('K', 2) + kvdma('V', 1) + kvdma('K', 3) + kvdma('V', 2)
    for s in range(40):
        b, st = s >> 1, s & 1
        mf = []
        for g in range(8):
            for r in range(2 if g < 7 else 1):
                d = R('v', 64 + (r * 6 + g) * 16, 16) if g < 6 else R('a', 192 + (r if g == 6 else 2) * 16, 16)
                c = '0' if (s == 0 and g < 6) else d
                mf.append(f"{MF} {d}, {R('a', st * 32 + g * 4, 4)}, {R('a', 64 + (s % 8) * 8 + 4 * r, 4)}, {c}")
        S = Sched(mf)
        if st == 1 and b < 19:
            S.at(0, [f"@waitvm W{b+1}", "s_barrier"])
        if s < 39: S.spread(wread(s + 1), 0, 13)
        if s + XD < 40: S.spread(xload(s + XD), 3, 10)
        if st == 1 and b + 3 < 20: S.spread(wdma(b + 3), 1, 14)
        if s >= 34 and kv: S.spread(kv[:7], 1, 14); kv = kv[7:]
        o += S.lines()
    return o

def kread(i, s): return f"ds_read_b128 {R('v', 224 + (s % 8) * 4, 4)}, v{8 + (s & 3)} offset:{(i % 4) * 12288 + (s >> 2) * 4096}"
def vread(i, g, u):
    return [f"ds_read_b64_tr_b16 {R('a', 192 + (g * 2 + u) * 4 + 2 * e_, 2)}, v{12 + (g & 1)} offset:{(i % 4) * 12288 + (g >> 1) * 4096 + u * 2048 + e_ * 1024}" for e_ in range(2)]
def smax(i, r):
    o = []
    for p in range(8):
        t = 18 + (p & 1) * 2; s = 160 + r * 16 + 2 * p
        o += [f"v_exp_f32 v{t}, v{s}", f"v_exp_f32 v{t+1}, v{s+1}"]
        cv = f"v_cvt_pk_bf16_f32 v{192 + (i & 1) * 16 + r * 8 + p}, v{t}, v{t+1}"
        if p == 0: o += [f"v_mov_b32 v{16+r}, v{t}", cv, f"v_add_f32 v{16+r}, v{16+r}, v{t+1}"]
        else: o += [f"v_add_f32 v{16+r}, v{16+r}, v{t}", cv, f"v_add_f32 v{16+r}, v{16+r}, v{t+1}"]
    return o
def tmax(r, d):
    s = 160 + r * 16
    o = [f"v_max3_f32 v{d}, v{s}, v{s+1}, v{s+2}"]
    for k in range(3, 15, 2): o.append(f"v_max3_f32 v{d}, v{d}, v{s+k}, v{s+k+1}")
    o += [f"v_max_f32 v{d}, v{d}, v{s+15}", f"v_mov_b32 v{d+1}, v{d}", f"v_permlane32_swap_b32 v{d}, v{d+1}", f"v_max_f32 v{d}, v{d}, v{d+1}"]
    return o
def qk_order():
    od = [(s, r) for s in range(10) for r in range(2)]
    return od + [(10, 0), (11, 0), (10, 1), (11, 1)]
def flagstore(off):
    return [f"buffer_store_dword v46, v45, s[12:15], 0 offen offset:{off} sc1"]

def rare(par):
    o = [f"RARE{par}:", "s_waitcnt lgkmcnt(0)", "s_nop 15"]
    for r in range(2):
        o += tmax(r, 22) + ["v_max_f32 v22, 0, v22", "v_sub_f32 v23, 0, v22", "v_exp_f32 v23, v23"]
        for k in range(16):
            o += [f"v_sub_f32 v{160+r*16+k}, v{160+r*16+k}, v22", f"v_sub_f32 v{NEGM+r*16+k}, v{NEGM+r*16+k}, v22"]
        o += [f"v_mul_f32 v{14+r}, v{14+r}, v23"]
        for k in range(96):
            o += [f"v_accvgpr_read_b32 v24, a{r*96+k}", "v_mul_f32 v24, v24, v23", f"v_accvgpr_write_b32 a{r*96+k}, v24"]
        o += smax(par, r)
    o += ["s_nop 3"]
    ts = [i for i in range(1, 16) if (i & 1) == par]
    for i in ts[:-1]: o += [f"s_cmp_eq_u32 s55, {i}", f"s_cbranch_scc1 RET{i}"]
    o += [f"s_branch RET{ts[-1]}"]
    return run(o)
NEGM = 32
```

```python
from gen2 import *
import sys
def flagstore(off): return [f"buffer_store_dword v29, v28, s[12:15], 0 offen offset:{off} sc1"]
SLOW = []
def polladdr(kind):
    if kind == 'H':
        return ["s_and_b32 s63, s2, 0xe6", "v_and_b32 v25, 1, v0", "v_bfe_u32 v24, v0, 1, 2", "v_lshl_add_u32 v25, v24, 3, v25",
                "v_add_u32 v25, s63, v25", "v_lshlrev_b32 v25, 7, v25"]
    if kind == 'O':
        return ["s_and_b32 s63, s2, 0xe7", "v_and_b32 v25, 3, v0", "v_lshlrev_b32 v25, 3, v25", "v_add_u32 v25, s63, v25", "v_lshlrev_b32 v25, 7, v25"]
    return ["s_and_b32 s63, s2, 0xf8", "v_and_b32 v25, 7, v0", "v_add_u32 v25, s63, v25", "v_lshlrev_b32 v25, 7, v25"]
FOFF = {'H': 0, 'O': 4, 'P': 8}
def pollissue(kind):
    return polladdr(kind) + [f"buffer_load_dword v25, v25, s[12:15], s95 offen offset:{FOFF[kind]} sc1"]
def pollcheck(kind):
    SLOW.extend(run([f"SLOW{kind}:", "s_mov_b32 s55, 0", f"SLP{kind}:"] + pollissue(kind) +
                    ["s_waitcnt vmcnt(0)", "v_cmp_ne_u32 vcc, 1, v25", "s_add_u32 s55, s55, 1", "s_cmp_ge_u32 s55, 0x40000",
                     f"s_cbranch_scc1 GO{kind}", f"s_cbranch_vccnz SLP{kind}", f"s_branch GO{kind}"]))
    return ["v_cmp_ne_u32 vcc, 1, v25", f"s_cbranch_vccnz SLOW{kind}", f"GO{kind}:"]

def bdma(B):
    g = []
    if B < 3 or B >= 9:
        q, bb = (0, B) if B < 3 else ((B - 6) // 3, (B - 6) % 3)
        pre = [f"s_add_u32 s45, s5, {q}", "s_and_b32 s45, s45, 3", "s_mul_i32 s45, s45, 245760", "s_add_u32 s45, s45, s44"] if bb == 0 else ["s_add_u32 s45, s45, 81920"]
        sr, so = 24, 45
    else:
        pre = ["s_add_u32 s46, s46, 81920"] if B > 3 else []
        sr, so = 28, 46
    for i in range(5):
        g.append((pre if i == 0 else []) + [f"s_add_u32 m0, s47, {(B % 8) * 20480 + i * 1024}"])
        g.append([f"buffer_load_dwordx4 v{1+i}, s[{sr}:{sr+3}], s{so} offen lds ;#B{B}"])
    return g
def bread(B, st, n, slot):
    sl = B % 8; base = (31, 8, 9)[sl // 3]
    return [f"ds_read_b64_tr_b16 {R('v', 32 + slot * 4 + 2 * e_, 2)}, v{base} offset:{(sl % 3) * 20480 + st * 5120 + e_ * 1280 + n * 64}" for e_ in range(2)]
def acc(r, n):
    i = n * 2 + r
    return ('v', 160 + 16 * i) if i < 6 else ('a', 192 + 16 * (i - 6))
def oepi(s):
    o = []
    for r in range(2):
        a = (r * 6 + (s >> 1)) * 16 + 8 * (s & 1); d = 64 + r * 48 + 4 * s
        for k in range(4):
            t = 18 + (k & 1) * 2
            o += [f"v_accvgpr_read_b32 v{t}, a{a+2*k}", f"v_accvgpr_read_b32 v{t+1}, a{a+2*k+1}",
                  f"v_mul_f32 v{t}, v{t}, v{14+r}", f"v_mul_f32 v{t+1}, v{t+1}, v{14+r}", f"v_cvt_pk_bf16_f32 v{d+k}, v{t}, v{t+1}"]
        o.append(f"buffer_store_dwordx4 {R('v', d, 4)}, v{26+r}, s[12:15], s{(59,60,61)[s>>2]} offen offset:{(s & 3) * 1024} sc1 ;#OST")
    return o
def setup3():
    o = []; e = o.append
    for i in range(5):
        e(f"v_add_u32 v22, {64*i}, v0"); e("v_mul_u32_u24 v23, 3277, v22"); e("v_lshrrev_b32 v23, 16, v23")
        e("v_mul_u32_u24 v23, 960, v23"); e(f"v_lshl_add_u32 v{1+i}, v22, 4, v23")
    e("s_mul_i32 s47, s3, 5120"); e("s_mul_i32 s44, s4, 983040"); e("s_mul_i32 s63, s3, 20480"); e("s_add_u32 s44, s44, s63")
    e("s_lshr_b32 s46, s4, 1"); e("s_mul_i32 s46, s46, 491520"); e("s_add_u32 s46, s46, s63")
    e("s_mul_i32 s59, s7, 12288"); e("s_add_u32 s60, s59, 4096"); e("s_add_u32 s61, s59, 8192")
    e(f"s_mov_b32 s95, {FL}"); e("s_lshl_b32 s63, s2, 7"); e("s_add_u32 s63, s63, s95")
    e(["s_cmp_eq_u32 s3, 0", f"s_cselect_b32 s63, s63, {OOB}"])
    e(f"v_mov_b32 v28, {OOB}"); e("v_mov_b32 v29, s63"); e("v_cmp_eq_u32 vcc, 0, v0"); e("v_cndmask_b32 v28, v28, v29, vcc"); e("v_mov_b32 v29, 1")
    return o

def p2(cfg):
    o = stamp(cfg, 1)
    o += ["@waitvm K0", "s_barrier"]
    for r in range(2):
        for k in range(48):
            a = 64 + r * 96 + 2 * k
            o += [f"v_pk_mul_f32 v[{a}:{a+1}], v[{a}:{a+1}], s[52:53]", f"v_cvt_pk_bf16_f32 v{64+r*48+k}, v{a}, v{a+1}"]
    hep = []
    for tl in range(3):
        for u in range(2):
            d = 192 + (tl * 2 + u) * 4
            for k in range(4):
                a = 192 + tl * 16 + u * 8 + 2 * k; t = 18 + (k & 1) * 2
                hep += [f"v_accvgpr_read_b32 v{t}, a{a}", f"v_accvgpr_read_b32 v{t+1}, a{a+1}", f"v_max_f32 v{t}, 0, v{t}", f"v_max_f32 v{t+1}, 0, v{t+1}",
                        f"v_mul_f32 v{t}, v{t}, v{t}", f"v_mul_f32 v{t+1}, v{t+1}, v{t+1}", f"v_cvt_pk_bf16_f32 v{d+k}, v{t}, v{t+1}"]
            if tl < 2: hep.append(f"buffer_store_dwordx4 {R('v', d, 4)}, v{28+tl}, s[12:15], s94 offen offset:{u*1024} sc1 ;#HST")
            else: hep.append(f"buffer_store_dwordx4 {R('v', d, 4)}, v28, s[12:15], 0 offen offset:{2048+u*1024} sc1 ;#HST")
    o += [kread(0, s) for s in range(6)] + hep[:29]; hep = hep[29:]
    o += stamp(cfg, 2)
    for i in range(17):
        if i < 16:
            mf = []
            for s, r in qk_order():
                d = R('v', 160 + r * 16, 16)
                c = d if s else ('0' if i == 0 else R('v', NEGM + r * 16, 16))
                mf.append(f"{MF} {d}, {R('v', 224 + (s % 8) * 4, 4)}, {R('v', 64 + r * 48 + 4 * s, 4)}, {c}")
            S = Sched(mf)
            if i > 0: S.at(0, ["v_add_f32 v14, v14, v16", "v_add_f32 v15, v15, v17"])
            for s in range(6, 12): S.at(2 * (s - 6) + 1, kread(i, s))
            if i == 0: S.spread(hep, 0, 23)
            else: S.spread(flat([vread(i - 1, g, u) for g in range(6) for u in range(2)]), 0, 20)
            if i == 3: S.spread(setup3(), 1, 23)
            if i in (6, 8, 10): S.spread(bdma((i - 6) // 2), 2, 22)
            if i == 14: S.spread(pollissue('H'), 4, 22)
            if i == 15: S.at(22, pollcheck('H'))
            o += S.lines()
        if i == 0:
            o += ["@waitvm K1 V0", "s_waitcnt lgkmcnt(0)", "s_barrier"] + flat(kvdma('K', 4) + kvdma('V', 3))
            o += [kread(1, s) for s in range(6)]
            for r in range(2):
                o += tmax(r, 22)
                for k in range(16): o += [f"v_sub_f32 v{160+r*16+k}, v{160+r*16+k}, v22", f"v_sub_f32 v{NEGM+r*16+k}, 0, v22"]
                o += smax(0, r) + [f"v_mov_b32 v{14+r}, 0"]
            continue
        mf = []
        for g in range(6):
            for u in range(2):
                for r in range(2):
                    d = R('a', (r * 6 + g) * 16, 16)
                    c = '0' if (i == 1 and u == 0) else d
                    mf.append(f"{MF} {d}, {R('a', 192 + (g * 2 + u) * 4, 4)}, {R('v', 192 + ((i - 1) & 1) * 16 + r * 8 + u * 4, 4)}, {c}")
        S = Sched(mf)
        if i < 16:
            S.at(0, [f"@waitvm K{i+1} V{i}" + (" HST" if i == 4 else ""), "s_waitcnt lgkmcnt(0)", "s_barrier"])
            if i == 4: S.at(0, flagstore(0))
            S.spread(smax(i, 0) + smax(i, 1), 0, 21)
            dm = (kvdma('K', i + 4) if i + 4 < 16 else []) + (kvdma('V', i + 3) if i + 3 < 16 else [])
            S.spread(dm, 1, 16)
            if i < 15: S.spread([kread(i + 1, s) for s in range(6)], 17, 22)
            else:
                for f in range(12): S.at(2 * f + 1, vread(15, f >> 1, f & 1))
            S.at(22, ["v_add_f32 v22, v16, v17", "v_cmp_nge_f32 vcc, s54, v22"])
            S.at(23, [f"s_cbranch_vccnz STUB{i}", f"RET{i}:"])
            SLOW.extend([f"STUB{i}:", f"s_mov_b32 s55, {i}", f"s_branch RARE{i&1}"])
        else:
            fin = []
            for r in range(2):
                fin += [f"v_add_f32 v{14+r}, v{14+r}, v{16+r}", f"v_mov_b32 v{16+r}, v{14+r}"]
            for r in range(2): fin += [f"v_permlane32_swap_b32 v{14+r}, v{16+r}"]
            for r in range(2): fin += [f"v_add_f32 v{14+r}, v{14+r}, v{16+r}"]
            for r in range(2): fin += [f"v_rcp_f32 v{14+r}, v{14+r}"]
            fin += ["v_add_u32 v8, 61440, v31", "v_add_u32 v9, 122880, v31"]
            S.spread(fin, 0, 3)
            S.at(4, ["@waitvm B2", "s_waitcnt lgkmcnt(0)", "s_barrier"])
            S.spread(flat([bread(0, 0, n, n) for n in range(5)] + [bread(0, 1, 0, 5)]), 5, 20)
            S.spread(oepi(0) + oepi(1), 6, 23)
        o += S.lines()
    return o + stamp(cfg, 3)

def cvtstore(c, a, tmp, voff, soff, imm, tag):
    o = []
    for k in range(4):
        if c == 'a':
            t = 18 + (k & 1) * 2
            o += [f"v_accvgpr_read_b32 v{t}, a{a+2*k}", f"v_accvgpr_read_b32 v{t+1}, a{a+2*k+1}", f"v_cvt_pk_bf16_f32 v{tmp+k}, v{t}, v{t+1}"]
        else: o += [f"v_cvt_pk_bf16_f32 v{tmp+k}, v{a+2*k}, v{a+2*k+1}"]
    o.append(f"buffer_store_dwordx4 {R('v', tmp, 4)}, v{voff}, s[12:15], {soff} offen offset:{imm} sc1 ;#{tag}")
    return o
US = ('0', 's56', 's57')
def oload(q, s):
    c, b = ('a', 96) if q == 2 else ('v', 64)
    pre = [f"s_add_u32 s59, s5, {q}", "s_and_b32 s59, s59, 3", "s_lshl_b32 s63, s4, 2", "s_add_u32 s59, s59, s63", "s_mul_i32 s59, s59, 12288",
           "s_add_u32 s60, s59, 4096", "s_add_u32 s61, s59, 8192"] if s == 0 else []
    return [pre + [f"buffer_load_dwordx4 {R(c, b + 4 * s, 4)}, v26, s[12:15], s{(59,60,61)[s>>2]} offen offset:{(s & 3) * 1024} sc1"],
            [f"buffer_load_dwordx4 {R(c, b + 48 + 4 * s, 4)}, v27, s[12:15], s{(59,60,61)[s>>2]} offen offset:{(s & 3) * 1024} sc1"]]

def p3(cfg):
    LA = 6
    fr = []
    for B in range(15):
        for st in range(4):
            for n in range(5): fr.append((B, st, n))
    for n in range(5):
        for s in range(12): fr.append((15 + s // 4, s % 4, n))
    mf = []; first = {}; fslot = []
    for f, (B, st, n) in enumerate(fr):
        w = R('v', 32 + (f % 8) * 4, 4); fslot.append(len(mf)); first.setdefault((B, st), len(mf))
        if 3 <= B < 9:
            s = (B - 3) * 4 + st; d = R('a', 16 * n, 16)
            mf.append(f"{MF} {d}, {w}, {R('a', 96 + 4 * s, 4)}, {'0' if s == 0 else d}")
        else:
            q = 0 if B < 3 else (B - 6) // 3; s = (B % 3) * 4 + st
            c, b = ('a', 96) if q == 2 else ('v', 64)
            for r in range(2):
                d = R(*acc(r, n), 16)
                mf.append(f"{MF} {d}, {w}, {R(c, b + r * 48 + 4 * s, 4)}, {'0' if (B, st) == (0, 0) else d}")
    S = Sched(mf); N = len(mf)
    bar = {}
    for B in range(3, 16):
        f0 = B * 20 - LA
        bar[B] = fslot[f0]
        w = f"@waitvm B{B}" if B < 15 else "@waitvm B15 B16 B17"
        if B == cfg.get('oflagB', 4): S.at(bar[B], [w + " OST", "s_barrier"] + flagstore(4))
        else: S.at(bar[B], [w, "s_barrier"])
    for f in range(len(fr) - LA):
        rd = bread(*fr[f + LA], (f + LA) % 8)
        if fslot[f] + 1 < N and (f + 1 == len(fr) or fslot[f + 1] > fslot[f] + 1): S.at(fslot[f], rd[0]); S.at(fslot[f] + 1, rd[1])
        else: S.at(fslot[f], rd)
    su = ["s_and_b32 s63, s4, 1", "s_lshl_b32 s63, s63, 2", "s_add_u32 s63, s63, s3", "s_lshl_b32 s48, s6, 3", "s_add_u32 s48, s48, s63",
          f"s_mul_i32 s48, s48, {96*1024}", "s_lshr_b32 s49, s4, 1", "s_mul_i32 s50, s49, 24576", "s_add_u32 s48, s48, s50", f"s_add_u32 s48, s48, {HB}",
          "s_lshr_b32 s50, s2, 3", f"s_mul_i32 s50, s50, {8*12*10240}", f"s_add_u32 s50, s50, {PB}",
          "s_mul_i32 s63, s63, 12", "s_add_u32 s63, s63, s49", "s_add_u32 s63, s63, 8", "s_mul_i32 s63, s63, 10240", "s_add_u32 s63, s63, s50", "v_add_u32 v10, s63, v30"]
    for r, sg in ((0, 91), (1, 92)):
        su += [f"s_and_b32 s63, s{sg}, 7", "s_mul_i32 s63, s63, 12", "s_add_u32 s63, s63, s4", "s_mul_i32 s63, s63, 10240", "s_add_u32 s63, s63, s50", f"v_add_u32 v{12+r}, s63, v30"]
    S.spread(su, 0, 9)
    for s in range(10): S.spread(oepi(s + 2), 10 * s, 10 * s + 9)
    S.spread(bdma(3) + bdma(4) + bdma(5) + bdma(6) + bdma(7), 0, 99)
    hl = []
    for s in range(24):
        hl.append([f"buffer_load_dwordx4 {R('a', 96 + 4 * s, 4)}, v30, s[12:15], s48 offen offset:{(s & 3) * 1024} sc1"] + (["s_add_u32 s48, s48, 4096"] if s & 3 == 3 else []))
    for s in range(24): S.at(max(10 + s, (s // 2 - 1) * 10 + (s & 1) * 5), hl[s])
    for B in range(8, 18):
        b0 = bar[B - 5] if B - 5 >= 4 else bar[4]
        ln = 18 if B - 5 < 9 else 36
        if B == 8: S.spread(bdma(B), bar[3] + 1, bar[4] - 1)
        else: S.spread(bdma(B), b0 + 1, b0 + ln)
    pc = first[(cfg.get('ochkB', 7), 0)]
    S.spread(pollissue('O'), pc - 16, pc - 12); S.at(pc, pollcheck('O'))
    q1 = first[(9, 0)]; q2 = first[(12, 0)]; q3 = first[(15, 0)]
    S.spread([x for s in range(12) for x in oload(1, s)], pc + 1, q1 + 20)
    fe = []
    for un in range(10): fe += cvtstore('a', un * 8, 22 if False else 14, 10, US[un >> 2], (un & 3) * 1024, 'FST')
    S.spread(fe, q1 + 4, q1 + 50)
    S.spread([x for s in range(12) for x in oload(2, s)], q1 + 24, q2 - 10)
    S.spread([x for s in range(12) for x in oload(3, s)], q2, q2 + 70)
    S.spread(final_pre(), q2 + 72, q3 - 2)
    tail = []
    for n in range(5):
        ep = []
        for r in range(2):
            c, a = acc(r, n)
            for u in range(2):
                un = 2 * n + u
                ep += cvtstore(c, a + 8 * u, a + 8 * u if c == 'v' else 14, 12 + r, US[un >> 2], (un & 3) * 1024, 'PST')
        if n < 4: S.spread(ep, q3 + 24 * (n + 1) + 3, q3 + 24 * (n + 2) - 1)
        else: tail = ep
    if cfg.get('ts'):
        S.at(119, stamp(cfg, 4)); S.at(q1 - 1, stamp(cfg, 5)); S.at(q2 - 1, stamp(cfg, 6)); S.at(q3 - 1, stamp(cfg, 7))
    return S.lines() + tail + stamp(cfg, 8)

def final_pre():
    o = []; e = o.append
    e("s_lshl_b32 s63, s6, 3"); e("s_add_u32 s63, s63, s4"); e("s_mul_i32 s63, s63, 40960"); e("s_mul_i32 s49, s5, 320"); e("s_lshl_b32 s51, s3, 5")
    e("s_add_u32 s49, s49, s51"); e("s_add_u32 s63, s63, s49")
    e("v_and_b32 v6, 31, v0"); e("v_mul_u32_u24 v6, 1280, v6"); e("v_lshrrev_b32 v11, 5, v0"); e("v_lshlrev_b32 v11, 4, v11")
    e("v_add3_u32 v6, v6, v11, s63"); e(["s_cmp_lt_u32 s3, 2", f"s_cselect_b32 s58, 0, {OOB}"]); e("v_add_u32 v7, s58, v6"); e("v_add_u32 v24, s58, v11")
    for k in range(3):
        e(f"buffer_load_dwordx4 {R('a', 4 * k, 4)}, v{7 if k == 2 else 6}, s[36:39], 0 offen offset:{128*k}")
        e(f"buffer_load_dwordx4 {R('a', 12 + 4 * k, 4)}, v{24 if k == 2 else 11}, s[96:99], s49 offen offset:{128*k}")
    e(f"s_mul_i32 s63, s4, {12*10240}"); e("s_add_u32 s50, s50, s63"); e("s_lshl_b32 s63, s3, 10"); e("s_add_u32 s50, s50, s63")
    e("v_add_u32 v11, s58, v30")
    return o

def final(cfg):
    o = ["@waitvm PST", "s_barrier"] + flagstore(8) + stamp(cfg, 9) + pollissue('P') + pollcheck('P') + stamp(cfg, 10)
    e = o.append
    for k in range(3):
        for src in range(12):
            e(f"s_add_u32 s63, s50, {src*10240 + k*4096}")
            e(f"buffer_load_dwordx4 {R('v', 64 + (k * 12 + src) * 4, 4)}, v{11 if k == 2 else 30}, s[12:15], s63 offen sc1")
    e(f"s_mov_b32 s52, {f32(-math.log2(math.e))}")
    for k in range(3):
        for i in range(4):
            e(f"v_accvgpr_read_b32 v18, a{12+4*k+i}"); e(f"v_lshlrev_b32 v{40+2*i}, 16, v18"); e(f"v_and_b32 v{41+2*i}, 0xffff0000, v18")
            e(f"v_accvgpr_read_b32 v18, a{4*k+i}"); e(f"v_lshlrev_b32 v{48+2*i}, 16, v18"); e(f"v_and_b32 v{49+2*i}, 0xffff0000, v18")
        for src in range(12):
            d = 32 if src < 8 else 40
            for i in range(4):
                s = 64 + (k * 12 + src) * 4 + i
                if src == 0: e(f"v_lshlrev_b32 v{d+2*i}, 16, v{s}"); e(f"v_and_b32 v{d+2*i+1}, 0xffff0000, v{s}")
                else:
                    e(f"v_lshlrev_b32 v18, 16, v{s}"); e(f"v_and_b32 v19, 0xffff0000, v{s}")
                    e(f"v_add_f32 v{d+2*i}, v{d+2*i}, v18"); e(f"v_add_f32 v{d+2*i+1}, v{d+2*i+1}, v19")
        for i in range(8): e(f"v_mul_f32 v{56+i}, s52, v{40+i}")
        for i in range(8): e(f"v_exp_f32 v{56+i}, v{56+i}")
        for i in range(8): e(f"v_add_f32 v{56+i}, 1.0, v{56+i}")
        for i in range(8): e(f"v_rcp_f32 v{56+i}, v{56+i}")
        for i in range(8): e(f"v_mul_f32 v{56+i}, v{56+i}, v{40+i}")
        for i in range(8): e(f"v_fma_f32 v{56+i}, v{56+i}, v{32+i}, v{48+i}")
        for i in range(4): e(f"v_cvt_pk_bf16_f32 v{20+i}, v{56+2*i}, v{57+2*i}")
        e(f"buffer_store_dwordx4 v[20:23], v{7 if k == 2 else 6}, s[40:43], 0 offen offset:{128*k}")
    if cfg.get('ts'):
        o += stamp(cfg, 11) + ["s_waitcnt lgkmcnt(0)", "s_lshl_b32 s63, s2, 2", "s_add_u32 s63, s63, s3", "s_lshl_b32 s63, s63, 6", f"s_add_u32 s63, s63, {TS}", "v_mov_b32 v1, 0"]
        for i in range(12): o += [f"v_mov_b32 v2, s{64+2*i}", f"buffer_store_dword v2, v1, s[12:15], s63 offen offset:{4*i}"]
    return o + ["s_waitcnt vmcnt(0)"]

def kd(name, vg, ao):
    return [f".amdhsa_kernel {name}", f"  .amdhsa_next_free_vgpr {vg}", "  .amdhsa_next_free_sgpr 102", f"  .amdhsa_accum_offset {ao}",
            "  .amdhsa_group_segment_fixed_size 0", "  .amdhsa_kernarg_size 104", "  .amdhsa_user_sgpr_count 2",
            "  .amdhsa_user_sgpr_kernarg_segment_ptr 1", "  .amdhsa_system_sgpr_workgroup_id_x 1", ".end_amdhsa_kernel"]
def hdr(name): return [f".globl {name}", ".p2align 8", f".type {name},@function", f"{name}:"]

def build(cfg):
    SLOW.clear()
    ref = open(f"cdna_kernels/{NAME}.s.ref").read().split("\n")
    L = [l for l in ref[:16]]
    L += ["; @launch kernel=ln_kernel grid=(256,1,1) block=(256,1,1) lds=256",
          f"; @launch kernel={NAME}_kernel grid=(256,1,1) block=(256,1,1) lds=163840",
          '.amdgcn_target "amdgcn-amd-amdhsa--gfx950"', ".text"]
    L += hdr("ln_kernel") + k0(cfg)
    body = prologue(cfg) + p1(cfg) + p2(cfg) + p3(cfg) + final(cfg)
    L += hdr(NAME + "_kernel") + run([x for x in body if x]) + ["K1END:", "s_endpgm"] + SLOW + rare(0) + rare(1)
    L += ['.section .rodata,"a"', ".p2align 6"] + kd("ln_kernel", 68, 68) + [".p2align 6"] + kd(NAME + "_kernel", 512, 256)
    return "\n".join(L) + "\n"

if __name__ == "__main__":
    cfg = dict(kv.split("=") for kv in sys.argv[2:])
    cfg = {k: int(v) for k, v in cfg.items()}
    open(sys.argv[1], "w").write(build(cfg))
```

```python
from asmlib import *
import math, struct
NAME = "recurrent_scan__sliding_block_cached__dense_activation_squared_relu__prompt"
XS, OB, HB, PB, FL, TS = 0, 0x400000, 0x1C00000, 0x2200000, 0x4000000, 0x4100000
WSSZ = 0x4200000
OOB = 0x40000000
def f32(x): return "0x%08x" % struct.unpack("<I", struct.pack("<f", x))[0]
MF = "v_mfma_f32_32x32x16_bf16"

def srd(d, ptr, size, add=None):
    o = []
    if add is None: o += [f"s_mov_b32 s{d}, s{ptr}", f"s_mov_b32 s{d+1}, s{ptr+1}"]
    else: o += [f"s_add_u32 s{d}, s{ptr}, {add}", f"s_addc_u32 s{d+1}, s{ptr+1}, 0"]
    return o + [f"s_mov_b32 s{d+2}, {size}", f"s_mov_b32 s{d+3}, 0x20000"]

def bf16r(d, s):
    return [f"v_cvt_pk_bf16_f32 {d}, {s}, {s}", f"v_lshlrev_b32 {d}, 16, {d}"]

def k0(cfg):
    o = []; e = o.append
    e("s_cmp_ge_u32 s2, 256"); e("s_cbranch_scc1 K0END")
    if cfg.get('ts'): e("s_memrealtime s[30:31]")
    e("s_load_dwordx2 s[4:5], s[0:1], 0"); e("s_load_dwordx2 s[6:7], s[0:1], 96")
    e("v_lshrrev_b32 v1, 6, v0"); e("v_readfirstlane_b32 s3, v1")
    e("v_and_b32 v2, 7, v0"); e("v_lshrrev_b32 v3, 3, v0")
    e("s_lshl_b32 s16, s2, 3"); e("v_add_u32 v4, s16, v2")
    e("v_mul_u32_u24 v5, 1280, v4"); e("v_lshlrev_b32 v6, 4, v3"); e("v_add_u32 v6, v5, v6")
    e(f"s_mov_b32 s17, {OOB}"); e("s_cmp_lt_u32 s3, 2"); e("s_cselect_b32 s17, 0, s17"); e("v_add_u32 v7, s17, v6")
    e("s_waitcnt lgkmcnt(0)")
    o += srd(8, 4, 2048 * 1280) + srd(12, 6, WSSZ)
    e("buffer_load_ushort v8, v5, s[8:11], 0 offen")
    e("buffer_load_dwordx4 v[12:15], v6, s[8:11], 0 offen")
    e("buffer_load_dwordx4 v[16:19], v6, s[8:11], 0 offen offset:512")
    e("buffer_load_dwordx4 v[20:23], v7, s[8:11], 0 offen offset:1024")
    e("s_lshl_b32 s18, s2, 7"); e(f"s_add_u32 s18, s18, {FL}")
    e(f"v_mov_b32 v9, {OOB}"); e("v_lshlrev_b32 v10, 2, v0"); e("v_cmp_gt_u32 vcc, 32, v0")
    e("v_cndmask_b32 v9, v9, v10, vcc"); e("v_mov_b32 v10, 0")
    e("buffer_store_dword v10, v9, s[12:15], s18 offen")
    o += cfg.get('k0_extra', [])
    e("v_lshrrev_b32 v9, 5, v4"); e("v_mul_u32_u24 v9, 40960, v9"); e("v_and_b32 v10, 31, v4")
    e("v_lshlrev_b32 v10, 4, v10"); e("v_add_u32 v9, v9, v10")
    e("v_lshlrev_b32 v10, 9, v3"); e("v_add_u32 v9, v9, v10"); e("v_add_u32 v11, s17, v9")
    e("v_lshlrev_b32 v56, 3, v2"); e("s_lshl_b32 s19, s3, 6"); e("v_add_u32 v57, s19, v56")
    e("v_lshlrev_b32 v8, 16, v8"); e("v_mov_b32 v50, 0"); e("v_mov_b32 v51, 0")
    for c in range(3):
        for i in range(4):
            e(f"v_lshlrev_b32 v{24+c*8+2*i}, 16, v{12+c*4+i}"); e(f"v_and_b32 v{25+c*8+2*i}, 0xffff0000, v{12+c*4+i}")
        if c == 2: e("s_cmp_ge_u32 s3, 2"); e("s_cbranch_scc1 K0SK")
        for i in range(8):
            e(f"v_sub_f32 v52, v{24+c*8+i}, v8"); e("v_add_f32 v50, v50, v52"); e("v_fmac_f32 v51, v52, v52")
    e("K0SK:"); e("s_nop 1")
    for r in (50, 51): e(f"v_add_f32_dpp v{r}, v{r}, v{r} row_ror:8 row_mask:0xf bank_mask:0xf")
    for sw in ("16", "32"):
        e("v_mov_b32 v52, v50"); e("v_mov_b32 v53, v51")
        e(f"v_permlane{sw}_swap_b32 v50, v52"); e(f"v_permlane{sw}_swap_b32 v51, v53")
        e("v_add_f32 v50, v50, v52"); e("v_add_f32 v51, v51, v53")
    e("ds_write_b64 v57, v[50:51]"); e("s_waitcnt lgkmcnt(0)"); e("s_barrier")
    for w in range(4): e(f"ds_read_b64 v[{58+2*w}:{59+2*w}], v56 offset:{64*w}")
    e("v_add_f32 v50, v58, v60"); e("v_add_f32 v51, v59, v61"); e("v_add_f32 v52, v62, v64"); e("v_add_f32 v53, v63, v65")
    e("v_add_f32 v50, v50, v52"); e("v_add_f32 v51, v51, v53")
    e(f"v_mul_f32 v50, {f32(1/640)}, v50"); e(f"v_mul_f32 v51, {f32(1/640)}, v51")
    e("v_fma_f32 v51, -v50, v50, v51"); e("v_max_f32 v51, 0, v51"); e("v_add_f32 v50, v50, v8")
    o += bf16r("v50", "v50") + bf16r("v51", "v51")
    e(f"v_add_f32 v51, {f32(1e-5)}, v51"); o += bf16r("v51", "v51")
    e("v_sqrt_f32 v51, v51"); o += bf16r("v51", "v51"); e("v_rcp_f32 v51, v51")
    for c in range(3):
        for i in range(4):
            a, b = 24 + c * 8 + 2 * i, 25 + c * 8 + 2 * i
            e(f"v_sub_f32 v{a}, v{a}, v50"); e(f"v_sub_f32 v{b}, v{b}, v50")
            e(f"v_cvt_pk_bf16_f32 v52, v{a}, v{b}")
            e(f"v_lshlrev_b32 v{a}, 16, v52"); e(f"v_and_b32 v{b}, 0xffff0000, v52")
            e(f"v_mul_f32 v{a}, v{a}, v51"); e(f"v_mul_f32 v{b}, v{b}, v51")
            e(f"v_cvt_pk_bf16_f32 v{12+c*4+i}, v{a}, v{b}")
        e(f"s_mov_b32 s20, {c*16384}")
        e(f"buffer_store_dwordx4 v[{12+c*4}:{15+c*4}], v{11 if c == 2 else 9}, s[12:15], s20 offen")
    if cfg.get('ts'):
        o += ["s_waitcnt vmcnt(0)", "s_memrealtime s[32:33]", "s_waitcnt lgkmcnt(0)", "s_lshl_b32 s34, s2, 2", "s_add_u32 s34, s34, s3", "s_lshl_b32 s34, s34, 6",
              f"s_add_u32 s34, s34, {TS}", "v_mov_b32 v1, 0", "v_mov_b32 v2, s30", "v_mov_b32 v3, s32", "buffer_store_dwordx2 v[2:3], v1, s[12:15], s34 offen offset:56"]
    e("s_waitcnt vmcnt(0)"); e("K0END:"); e("s_endpgm")
    return run(o)
```

```python
from gen2 import *
import sys
def flagstore(off): return [f"buffer_store_dword v29, v28, s[12:15], 0 offen offset:{off} sc1"]
SLOW = []
CF = {}
MODES = ['sc1', '', 'sc0 sc1', 'nt', 'sc1 nt']
def polladdr(kind):
    if kind == 'H':
        return ["s_and_b32 s63, s2, 0xe6", "v_and_b32 v25, 1, v0", "v_bfe_u32 v24, v0, 1, 2", "v_lshl_add_u32 v25, v24, 3, v25",
                "v_add_u32 v25, s63, v25", "v_lshlrev_b32 v25, 7, v25"]
    if kind == 'O':
        return ["s_and_b32 s63, s2, 0xe7", "v_and_b32 v25, 3, v0", "v_lshlrev_b32 v25, 3, v25", "v_add_u32 v25, s63, v25", "v_lshlrev_b32 v25, 7, v25"]
    return ["s_and_b32 s63, s2, 0xf8", "v_and_b32 v25, 7, v0", "v_add_u32 v25, s63, v25", "v_lshlrev_b32 v25, 7, v25"]
FOFF = {'H': 0, 'O': 4, 'P': 8}
def pollissue(kind):
    return polladdr(kind) + [f"buffer_load_dword v25, v25, s[12:15], s95 offen offset:{FOFF[kind]} sc1"]
def pollcheck(kind):
    SLOW.extend(run([f"SLOW{kind}:", "s_mov_b32 s55, 0", f"SLP{kind}:"] + pollissue(kind) +
                    ["s_waitcnt vmcnt(0)", "v_cmp_ne_u32 vcc, 1, v25", "s_add_u32 s55, s55, 1", "s_cmp_ge_u32 s55, 0x40000",
                     f"s_cbranch_scc1 GO{kind}", f"s_cbranch_vccnz SLP{kind}", f"s_branch GO{kind}"]))
    return ["v_cmp_ne_u32 vcc, 1, v25", f"s_cbranch_vccnz SLOW{kind}", f"GO{kind}:"]

def bdma(B):
    g = []
    if B < 3 or B >= 9:
        q, bb = (0, B) if B < 3 else ((B - 6) // 3, (B - 6) % 3)
        pre = [f"s_add_u32 s45, s5, {q}", "s_and_b32 s45, s45, 3", "s_mul_i32 s45, s45, 245760", "s_add_u32 s45, s45, s44"] if bb == 0 else ["s_add_u32 s45, s45, 81920"]
        sr, so = 24, 45
    else:
        pre = ["s_add_u32 s46, s46, 81920"] if B > 3 else []
        sr, so = 28, 46
    for i in range(5):
        g.append((pre if i == 0 else []) + [f"s_add_u32 m0, s47, {(B % 8) * 20480 + i * 1024}"])
        g.append([f"buffer_load_dwordx4 v{1+i}, s[{sr}:{sr+3}], s{so} offen lds ;#B{B}"])
    return g
def bread(B, st, n, slot):
    sl = B % 8; base = (31, 8, 9)[sl // 3]
    return [f"ds_read_b64_tr_b16 {R('v', 32 + slot * 4 + 2 * e_, 2)}, v{base} offset:{(sl % 3) * 20480 + st * 5120 + e_ * 1280 + n * 64}" for e_ in range(2)]
def acc(r, n):
    i = n * 2 + r
    return ('v', 160 + 16 * i) if i < 6 else ('a', 192 + 16 * (i - 6))
def oepi(s):
    o = []
    for r in range(2):
        a = (r * 6 + (s >> 1)) * 16 + 8 * (s & 1); d = 64 + r * 48 + 4 * s
        for k in range(4):
            t = 18 + (k & 1) * 2
            o += [f"v_accvgpr_read_b32 v{t}, a{a+2*k}", f"v_accvgpr_read_b32 v{t+1}, a{a+2*k+1}",
                  f"v_mul_f32 v{t}, v{t}, v{14+r}", f"v_mul_f32 v{t+1}, v{t+1}, v{14+r}", f"v_cvt_pk_bf16_f32 v{d+k}, v{t}, v{t+1}"]
        o.append(f"buffer_store_dwordx4 {R('v', d, 4)}, v{26+r}, s[12:15], s{(59,60,61)[s>>2]} offen offset:{(s & 3) * 1024} {CF['OST']} ;#OST")
    return o
def setup3():
    o = []; e = o.append
    for i in range(5):
        e(f"v_add_u32 v22, {64*i}, v0"); e("v_mul_u32_u24 v23, 3277, v22"); e("v_lshrrev_b32 v23, 16, v23")
        e("v_mul_u32_u24 v23, 960, v23"); e(f"v_lshl_add_u32 v{1+i}, v22, 4, v23")
    e("s_mul_i32 s47, s3, 5120"); e("s_mul_i32 s44, s4, 983040"); e("s_mul_i32 s63, s3, 20480"); e("s_add_u32 s44, s44, s63")
    e("s_lshr_b32 s46, s4, 1"); e("s_mul_i32 s46, s46, 491520"); e("s_add_u32 s46, s46, s63")
    e("s_mul_i32 s59, s7, 12288"); e("s_add_u32 s60, s59, 4096"); e("s_add_u32 s61, s59, 8192")
    e(f"s_mov_b32 s95, {FL}"); e("s_lshl_b32 s63, s2, 7"); e("s_add_u32 s63, s63, s95")
    e(["s_cmp_eq_u32 s3, 0", f"s_cselect_b32 s63, s63, {OOB}"])
    e(f"v_mov_b32 v28, {OOB}"); e("v_mov_b32 v29, s63"); e("v_cmp_eq_u32 vcc, 0, v0"); e("v_cndmask_b32 v28, v28, v29, vcc"); e("v_mov_b32 v29, 1")
    return o

def wpref():
    return ["s_lshr_b32 s63, s2, 3", "s_lshl_b32 s63, s63, 2", "s_add_u32 s63, s63, s3", "s_mul_i32 s62, s63, 7680", "s_mul_i32 s93, s4, 983040",
            "s_add_u32 s62, s62, s93", "v_lshlrev_b32 v22, 7, v0", "buffer_load_dword a241, v22, s[24:27], s62 offen",
            "s_mul_i32 s62, s63, 3840", "s_lshr_b32 s93, s4, 1", "s_mul_i32 s93, s93, 491520", "s_add_u32 s62, s62, s93",
            "v_and_b32 v23, 0xfff, v22", "buffer_load_dword a242, v23, s[28:31], s62 offen"]

def p2(cfg):
    o = stamp(cfg, 1)
    o += ["@waitvm K0", "s_barrier"]
    for r in range(2):
        for k in range(48):
            a = 64 + r * 96 + 2 * k
            o += [f"v_pk_mul_f32 v[{a}:{a+1}], v[{a}:{a+1}], s[52:53]", f"v_cvt_pk_bf16_f32 v{64+r*48+k}, v{a}, v{a+1}"]
    hep = []
    for tl in range(3):
        for u in range(2):
            d = 192 + (tl * 2 + u) * 4
            for k in range(4):
                a = 192 + tl * 16 + u * 8 + 2 * k; t = 18 + (k & 1) * 2
                hep += [f"v_accvgpr_read_b32 v{t}, a{a}", f"v_accvgpr_read_b32 v{t+1}, a{a+1}", f"v_max_f32 v{t}, 0, v{t}", f"v_max_f32 v{t+1}, 0, v{t+1}",
                        f"v_mul_f32 v{t}, v{t}, v{t}", f"v_mul_f32 v{t+1}, v{t+1}, v{t+1}", f"v_cvt_pk_bf16_f32 v{d+k}, v{t}, v{t+1}"]
            if tl < 2: hep.append(f"buffer_store_dwordx4 {R('v', d, 4)}, v{28+tl}, s[12:15], s94 offen offset:{u*1024} sc1 ;#HST")
            else: hep.append(f"buffer_store_dwordx4 {R('v', d, 4)}, v28, s[12:15], 0 offen offset:{2048+u*1024} sc1 ;#HST")
    o += [kread(0, s) for s in range(6)] + hep[:29]; hep = hep[29:]
    o += stamp(cfg, 2)
    for i in range(17):
        if i < 16:
            mf = []
            for s, r in qk_order():
                d = R('v', 160 + r * 16, 16)
                c = d if s else ('0' if i == 0 else R('v', NEGM + r * 16, 16))
                mf.append(f"{MF} {d}, {R('v', 224 + (s % 8) * 4, 4)}, {R('v', 64 + r * 48 + 4 * s, 4)}, {c}")
            S = Sched(mf)
            if i > 0: S.at(0, ["v_add_f32 v14, v14, v16", "v_add_f32 v15, v15, v17"])
            for s in range(6, 12): S.at(2 * (s - 6) + 1, kread(i, s))
            if i == 0: S.spread(hep, 0, 23)
            else: S.spread(flat([vread(i - 1, g, u) for g in range(6) for u in range(2)]), 0, 20)
            if i == 3: S.spread(setup3(), 1, 23)
            if i in (6, 8, 10): S.spread(bdma((i - 6) // 2), 2, 22)
            if i == 4 and cfg.get('pf', 1): S.spread(wpref(), 1, 22)
            if i == 14: S.spread(pollissue('H'), 4, 22)
            if i == 15: S.at(22, pollcheck('H'))
            o += S.lines()
        if i == 0:
            o += ["@waitvm K1 V0", "s_waitcnt lgkmcnt(0)", "s_barrier"] + flat(kvdma('K', 4) + kvdma('V', 3))
            o += [kread(1, s) for s in range(6)]
            for r in range(2):
                o += tmax(r, 22)
                for k in range(16): o += [f"v_sub_f32 v{160+r*16+k}, v{160+r*16+k}, v22", f"v_sub_f32 v{NEGM+r*16+k}, 0, v22"]
                o += smax(0, r) + [f"v_mov_b32 v{14+r}, 0"]
            continue
        mf = []
        for g in range(6):
            for u in range(2):
                for r in range(2):
                    d = R('a', (r * 6 + g) * 16, 16)
                    c = '0' if (i == 1 and u == 0) else d
                    mf.append(f"{MF} {d}, {R('a', 192 + (g * 2 + u) * 4, 4)}, {R('v', 192 + ((i - 1) & 1) * 16 + r * 8 + u * 4, 4)}, {c}")
        S = Sched(mf)
        if i < 16:
            S.at(0, [f"@waitvm K{i+1} V{i}" + (" HST" if i == 4 else ""), "s_waitcnt lgkmcnt(0)", "s_barrier"])
            if i == 4: S.at(0, flagstore(0))
            S.spread(smax(i, 0) + smax(i, 1), 0, 21)
            dm = (kvdma('K', i + 4) if i + 4 < 16 else []) + (kvdma('V', i + 3) if i + 3 < 16 else [])
            S.spread(dm, 1, 16)
            if i < 15: S.spread([kread(i + 1, s) for s in range(6)], 17, 22)
            else:
                for f in range(12): S.at(2 * f + 1, vread(15, f >> 1, f & 1))
            S.at(22, ["v_add_f32 v22, v16, v17", "v_cmp_nge_f32 vcc, s54, v22"])
            S.at(23, [f"s_cbranch_vccnz STUB{i}", f"RET{i}:"])
            SLOW.extend([f"STUB{i}:", f"s_mov_b32 s55, {i}", f"s_branch RARE{i&1}"])
        else:
            fin = []
            for r in range(2):
                fin += [f"v_add_f32 v{14+r}, v{14+r}, v{16+r}", f"v_mov_b32 v{16+r}, v{14+r}"]
            for r in range(2): fin += [f"v_permlane32_swap_b32 v{14+r}, v{16+r}"]
            for r in range(2): fin += [f"v_add_f32 v{14+r}, v{14+r}, v{16+r}"]
            for r in range(2): fin += [f"v_rcp_f32 v{14+r}, v{14+r}"]
            fin += ["v_add_u32 v8, 61440, v31", "v_add_u32 v9, 122880, v31"]
            S.spread(fin, 0, 3)
            S.at(4, ["@waitvm B2", "s_waitcnt lgkmcnt(0)", "s_barrier"])
            S.spread(flat([bread(0, 0, n, n) for n in range(5)] + [bread(0, 1, 0, 5)]), 5, 20)
            S.spread(oepi(0) + oepi(1), 6, 23)
        o += S.lines()
    return o + stamp(cfg, 3)

def cvtstore(c, a, tmp, voff, soff, imm, tag):
    o = []
    for k in range(4):
        if c == 'a':
            t = 18 + (k & 1) * 2
            o += [f"v_accvgpr_read_b32 v{t}, a{a+2*k}", f"v_accvgpr_read_b32 v{t+1}, a{a+2*k+1}", f"v_cvt_pk_bf16_f32 v{tmp+k}, v{t}, v{t+1}"]
        else: o += [f"v_cvt_pk_bf16_f32 v{tmp+k}, v{a+2*k}, v{a+2*k+1}"]
    o.append(f"buffer_store_dwordx4 {R('v', tmp, 4)}, v{voff}, s[12:15], {soff} offen offset:{imm} {CF[tag]} ;#{tag}")
    return o
US = ('0', 's56', 's57')
def oload(q, s):
    c, b = ('a', 96) if q == 2 else ('v', 64)
    pre = [f"s_add_u32 s59, s5, {q}", "s_and_b32 s59, s59, 3", "s_lshl_b32 s63, s4, 2", "s_add_u32 s59, s59, s63", "s_mul_i32 s59, s59, 12288",
           "s_add_u32 s60, s59, 4096", "s_add_u32 s61, s59, 8192"] if s == 0 else []
    return [pre + [f"buffer_load_dwordx4 {R(c, b + 4 * s, 4)}, v26, s[12:15], s{(59,60,61)[s>>2]} offen offset:{(s & 3) * 1024} sc1"],
            [f"buffer_load_dwordx4 {R(c, b + 48 + 4 * s, 4)}, v27, s[12:15], s{(59,60,61)[s>>2]} offen offset:{(s & 3) * 1024} sc1"]]

def p3(cfg):
    LA = 6
    fr = []
    for B in range(15):
        for st in range(4):
            for n in range(5): fr.append((B, st, n))
    for n in range(5):
        for s in range(12): fr.append((15 + s // 4, s % 4, n))
    mf = []; first = {}; fslot = []
    for f, (B, st, n) in enumerate(fr):
        w = R('v', 32 + (f % 8) * 4, 4); fslot.append(len(mf)); first.setdefault((B, st), len(mf))
        if 3 <= B < 9:
            s = (B - 3) * 4 + st; d = R('a', 16 * n, 16)
            mf.append(f"{MF} {d}, {w}, {R('a', 96 + 4 * s, 4)}, {'0' if s == 0 else d}")
        else:
            q = 0 if B < 3 else (B - 6) // 3; s = (B % 3) * 4 + st
            c, b = ('a', 96) if q == 2 else ('v', 64)
            for r in range(2):
                d = R(*acc(r, n), 16)
                mf.append(f"{MF} {d}, {w}, {R(c, b + r * 48 + 4 * s, 4)}, {'0' if (B, st) == (0, 0) else d}")
    S = Sched(mf); N = len(mf)
    bar = {}
    for B in range(3, 16):
        f0 = B * 20 - LA
        bar[B] = fslot[f0]
        w = f"@waitvm B{B}" if B < 15 else "@waitvm B15 B16 B17"
        if B == cfg.get('oflagB', 4): S.at(bar[B], [w + " OST", "s_barrier"] + flagstore(4))
        else: S.at(bar[B], [w, "s_barrier"])
    for f in range(len(fr) - LA):
        rd = bread(*fr[f + LA], (f + LA) % 8)
        if fslot[f] + 1 < N and (f + 1 == len(fr) or fslot[f + 1] > fslot[f] + 1): S.at(fslot[f], rd[0]); S.at(fslot[f] + 1, rd[1])
        else: S.at(fslot[f], rd)
    su = ["s_and_b32 s63, s4, 1", "s_lshl_b32 s63, s63, 2", "s_add_u32 s63, s63, s3", "s_lshl_b32 s48, s6, 3", "s_add_u32 s48, s48, s63",
          f"s_mul_i32 s48, s48, {96*1024}", "s_lshr_b32 s49, s4, 1", "s_mul_i32 s50, s49, 24576", "s_add_u32 s48, s48, s50", f"s_add_u32 s48, s48, {HB}",
          "s_lshr_b32 s50, s2, 3", f"s_mul_i32 s50, s50, {8*12*10240}", f"s_add_u32 s50, s50, {PB}",
          "s_mul_i32 s63, s63, 12", "s_add_u32 s63, s63, s49", "s_add_u32 s63, s63, 8", "s_mul_i32 s63, s63, 10240", "s_add_u32 s63, s63, s50", "v_add_u32 v10, s63, v30"]
    for r, sg in ((0, 91), (1, 92)):
        su += [f"s_and_b32 s63, s{sg}, 7", "s_mul_i32 s63, s63, 12", "s_add_u32 s63, s63, s4", "s_mul_i32 s63, s63, 10240", "s_add_u32 s63, s63, s50", f"v_add_u32 v{12+r}, s63, v30"]
    S.spread(su, 0, 9)
    for s in range(10): S.spread(oepi(s + 2), 10 * s, 10 * s + 9)
    S.spread(bdma(3) + bdma(4) + bdma(5) + bdma(6) + bdma(7), 0, 99)
    hl = []
    for s in range(24):
        hl.append([f"buffer_load_dwordx4 {R('a', 96 + 4 * s, 4)}, v30, s[12:15], s48 offen offset:{(s & 3) * 1024} sc1"] + (["s_add_u32 s48, s48, 4096"] if s & 3 == 3 else []))
    for s in range(24): S.at(max(10 + s, (s // 2 - 1) * 10 + (s & 1) * 5), hl[s])
    for B in range(8, 18):
        b0 = bar[B - 5] if B - 5 >= 4 else bar[4]
        ln = 18 if B - 5 < 9 else 36
        if B == 8: S.spread(bdma(B), bar[3] + 1, bar[4] - 1)
        else: S.spread(bdma(B), b0 + 1, b0 + ln)
    pc = first[(cfg.get('ochkB', 7), 0)]
    S.spread(pollissue('O'), pc - 16, pc - 12); S.at(pc, pollcheck('O'))
    q1 = first[(9, 0)]; q2 = first[(12, 0)]; q3 = first[(15, 0)]
    S.spread([x for s in range(12) for x in oload(1, s)], pc + 1, q1 + 20)
    fe = []
    for un in range(10): fe += cvtstore('a', un * 8, 22 if False else 14, 10, US[un >> 2], (un & 3) * 1024, 'FST')
    S.spread(fe, q1 + 4, q1 + 50)
    S.spread([x for s in range(12) for x in oload(2, s)], q1 + 24, q2 - 10)
    S.spread([x for s in range(12) for x in oload(3, s)], q2, q2 + 70)
    S.spread(final_pre(), q2 + 72, q3 - 2)
    tail = []
    for n in range(5):
        ep = []
        for r in range(2):
            c, a = acc(r, n)
            for u in range(2):
                un = 2 * n + u
                ep += cvtstore(c, a + 8 * u, a + 8 * u if c == 'v' else 14, 12 + r, US[un >> 2], (un & 3) * 1024, 'PST')
        if n < 4: S.spread(ep, q3 + 24 * (n + 1) + 3, q3 + 24 * (n + 2) - 1)
        else: tail = ep
    if cfg.get('ts'):
        S.at(119, stamp(cfg, 4)); S.at(q1 - 1, stamp(cfg, 5)); S.at(q2 - 1, stamp(cfg, 6)); S.at(q3 - 1, stamp(cfg, 7))
    return S.lines() + tail + stamp(cfg, 8)

def final_pre():
    o = []; e = o.append
    e("s_lshl_b32 s63, s6, 3"); e("s_add_u32 s63, s63, s4"); e("s_mul_i32 s63, s63, 40960"); e("s_mul_i32 s49, s5, 320"); e("s_lshl_b32 s51, s3, 5")
    e("s_add_u32 s49, s49, s51"); e("s_add_u32 s63, s63, s49")
    e("v_and_b32 v6, 31, v0"); e("v_mul_u32_u24 v6, 1280, v6"); e("v_lshrrev_b32 v11, 5, v0"); e("v_lshlrev_b32 v11, 4, v11")
    e("v_add3_u32 v6, v6, v11, s63"); e(["s_cmp_lt_u32 s3, 2", f"s_cselect_b32 s58, 0, {OOB}"]); e("v_add_u32 v7, s58, v6"); e("v_add_u32 v24, s58, v11")
    for k in range(3):
        e(f"buffer_load_dwordx4 {R('a', 4 * k, 4)}, v{7 if k == 2 else 6}, s[36:39], 0 offen offset:{128*k}")
        e(f"buffer_load_dwordx4 {R('a', 12 + 4 * k, 4)}, v{24 if k == 2 else 11}, s[96:99], s49 offen offset:{128*k}")
    e(f"s_mul_i32 s63, s4, {12*10240}"); e("s_add_u32 s50, s50, s63"); e("s_lshl_b32 s63, s3, 10"); e("s_add_u32 s50, s50, s63")
    e("v_add_u32 v11, s58, v30")
    return o

def final(cfg):
    o = ["@waitvm PST", "s_barrier"] + flagstore(8) + stamp(cfg, 9) + pollissue('P') + pollcheck('P') + stamp(cfg, 10)
    e = o.append
    for k in range(3):
        for src in range(12):
            e(f"s_add_u32 s63, s50, {src*10240 + k*4096}")
            e(f"buffer_load_dwordx4 {R('v', 64 + (k * 12 + src) * 4, 4)}, v{11 if k == 2 else 30}, s[12:15], s63 offen sc1")
    e(f"s_mov_b32 s52, {f32(-math.log2(math.e))}")
    for k in range(3):
        for i in range(4):
            e(f"v_accvgpr_read_b32 v18, a{12+4*k+i}"); e(f"v_lshlrev_b32 v{40+2*i}, 16, v18"); e(f"v_and_b32 v{41+2*i}, 0xffff0000, v18")
            e(f"v_accvgpr_read_b32 v18, a{4*k+i}"); e(f"v_lshlrev_b32 v{48+2*i}, 16, v18"); e(f"v_and_b32 v{49+2*i}, 0xffff0000, v18")
        for src in range(12):
            d = 32 if src < 8 else 40
            for i in range(4):
                s = 64 + (k * 12 + src) * 4 + i
                if src == 0: e(f"v_lshlrev_b32 v{d+2*i}, 16, v{s}"); e(f"v_and_b32 v{d+2*i+1}, 0xffff0000, v{s}")
                else:
                    e(f"v_lshlrev_b32 v18, 16, v{s}"); e(f"v_and_b32 v19, 0xffff0000, v{s}")
                    e(f"v_add_f32 v{d+2*i}, v{d+2*i}, v18"); e(f"v_add_f32 v{d+2*i+1}, v{d+2*i+1}, v19")
        for i in range(8): e(f"v_mul_f32 v{56+i}, s52, v{40+i}")
        for i in range(8): e(f"v_exp_f32 v{56+i}, v{56+i}")
        for i in range(8): e(f"v_add_f32 v{56+i}, 1.0, v{56+i}")
        for i in range(8): e(f"v_rcp_f32 v{56+i}, v{56+i}")
        for i in range(8): e(f"v_mul_f32 v{56+i}, v{56+i}, v{40+i}")
        for i in range(8): e(f"v_fma_f32 v{56+i}, v{56+i}, v{32+i}, v{48+i}")
        for i in range(4): e(f"v_cvt_pk_bf16_f32 v{20+i}, v{56+2*i}, v{57+2*i}")
        e(f"buffer_store_dwordx4 v[20:23], v{7 if k == 2 else 6}, s[40:43], 0 offen offset:{128*k}")
    if cfg.get('ts'):
        o += stamp(cfg, 11) + ["s_waitcnt vmcnt(0)", "s_memrealtime s[90:91]", "s_mov_b32 s88, s100", "s_waitcnt lgkmcnt(0)", "s_lshl_b32 s63, s2, 2", "s_add_u32 s63, s63, s3", "s_lshl_b32 s63, s63, 6", f"s_add_u32 s63, s63, {TS}", "v_mov_b32 v1, 0"]
        for i in range(14): o += [f"v_mov_b32 v2, s{64+2*i}", f"buffer_store_dword v2, v1, s[12:15], s63 offen offset:{4*i}"]
    return o + ["s_waitcnt vmcnt(0)"]

def kd(name, vg, ao):
    return [f".amdhsa_kernel {name}", f"  .amdhsa_next_free_vgpr {vg}", "  .amdhsa_next_free_sgpr 102", f"  .amdhsa_accum_offset {ao}",
            "  .amdhsa_group_segment_fixed_size 0", "  .amdhsa_kernarg_size 104", "  .amdhsa_user_sgpr_count 2",
            "  .amdhsa_user_sgpr_kernarg_segment_ptr 1", "  .amdhsa_system_sgpr_workgroup_id_x 1", ".end_amdhsa_kernel"]
def hdr(name): return [f".globl {name}", ".p2align 8", f".type {name},@function", f"{name}:"]

def build(cfg):
    SLOW.clear()
    CF.update(OST=MODES[cfg.get('osc', 0)], FST=MODES[cfg.get('psc', 0)], PST=MODES[cfg.get('psc', 0)])
    ref = open(f"cdna_kernels/{NAME}.s.ref").read().split("\n")
    L = [l for l in ref[:16]]
    L += ["; @launch kernel=ln_kernel grid=(256,1,1) block=(256,1,1) lds=256",
          f"; @launch kernel={NAME}_kernel grid=(256,1,1) block=(256,1,1) lds=163840",
          '.amdgcn_target "amdgcn-amd-amdhsa--gfx950"', ".text"]
    L += hdr("ln_kernel") + k0(cfg)
    body = prologue(cfg) + p1(cfg) + p2(cfg) + p3(cfg) + final(cfg)
    L += hdr(NAME + "_kernel") + run([x for x in body if x]) + ["K1END:", "s_endpgm"] + SLOW + rare(0) + rare(1)
    L += ['.section .rodata,"a"', ".p2align 6"] + kd("ln_kernel", 68, 68) + [".p2align 6"] + kd(NAME + "_kernel", 512, 256)
    return "\n".join(L) + "\n"

if __name__ == "__main__":
    cfg = dict(kv.split("=") for kv in sys.argv[2:])
    cfg = {k: int(v) for k, v in cfg.items()}
    open(sys.argv[1], "w").write(build(cfg))
```

```python
from gen2 import *
import sys
def flagstore(off): return [f"buffer_store_dword v29, v28, s[12:15], 0 offen offset:{off} sc1"]
SLOW = []
CF = {}
MODES = ['sc1', '', 'sc0 sc1', 'nt', 'sc1 nt']
def polladdr(kind):
    if kind == 'H':
        return ["s_and_b32 s63, s2, 0xe6", "v_and_b32 v25, 1, v0", "v_bfe_u32 v24, v0, 1, 2", "v_lshl_add_u32 v25, v24, 3, v25",
                "v_add_u32 v25, s63, v25", "v_lshlrev_b32 v25, 7, v25"]
    if kind == 'O':
        return ["s_and_b32 s63, s2, 0xe7", "v_and_b32 v25, 3, v0", "v_lshlrev_b32 v25, 3, v25", "v_add_u32 v25, s63, v25", "v_lshlrev_b32 v25, 7, v25"]
    return ["s_and_b32 s63, s2, 0xf8", "v_and_b32 v25, 7, v0", "v_add_u32 v25, s63, v25", "v_lshlrev_b32 v25, 7, v25"]
FOFF = {'H': 0, 'O': 4, 'P': 8}
def pollissue(kind):
    return polladdr(kind) + [f"buffer_load_dword v25, v25, s[12:15], s95 offen offset:{FOFF[kind]} sc1"]
def pollcheck(kind):
    SLOW.extend(run([f"SLOW{kind}:", "s_mov_b32 s55, 0", f"SLP{kind}:"] + pollissue(kind) +
                    ["s_waitcnt vmcnt(0)", "v_cmp_ne_u32 vcc, 1, v25", "s_add_u32 s55, s55, 1", "s_cmp_ge_u32 s55, 0x40000",
                     f"s_cbranch_scc1 GO{kind}", f"s_cbranch_vccnz SLP{kind}", f"s_branch GO{kind}"]))
    return ["v_cmp_ne_u32 vcc, 1, v25", f"s_cbranch_vccnz SLOW{kind}", f"GO{kind}:"]

def bdma(B):
    g = []
    if B < 3 or B >= 9:
        q, bb = (0, B) if B < 3 else ((B - 6) // 3, (B - 6) % 3)
        pre = [f"s_add_u32 s45, s5, {q}", "s_and_b32 s45, s45, 3", "s_mul_i32 s45, s45, 245760", "s_add_u32 s45, s45, s44"] if bb == 0 else ["s_add_u32 s45, s45, 81920"]
        sr, so = 24, 45
    else:
        pre = ["s_add_u32 s46, s46, 81920"] if B > 3 else []
        sr, so = 28, 46
    for i in range(5):
        g.append((pre if i == 0 else []) + [f"s_add_u32 m0, s47, {(B % 8) * 20480 + i * 1024}"])
        g.append([f"buffer_load_dwordx4 v{1+i}, s[{sr}:{sr+3}], s{so} offen lds ;#B{B}"])
    return g
def bread(B, st, n, slot):
    sl = B % 8; base = (31, 8, 9)[sl // 3]
    return [f"ds_read_b64_tr_b16 {R('v', 32 + slot * 4 + 2 * e_, 2)}, v{base} offset:{(sl % 3) * 20480 + st * 5120 + e_ * 1280 + n * 64}" for e_ in range(2)]
def acc(r, n):
    i = n * 2 + r
    return ('v', 160 + 16 * i) if i < 6 else ('a', 192 + 16 * (i - 6))
def oepi(s):
    o = []
    for r in range(2):
        a = (r * 6 + (s >> 1)) * 16 + 8 * (s & 1); d = 64 + r * 48 + 4 * s
        for k in range(4):
            t = 18 + (k & 1) * 2
            o += [f"v_accvgpr_read_b32 v{t}, a{a+2*k}", f"v_accvgpr_read_b32 v{t+1}, a{a+2*k+1}",
                  f"v_mul_f32 v{t}, v{t}, v{14+r}", f"v_mul_f32 v{t+1}, v{t+1}, v{14+r}", f"v_cvt_pk_bf16_f32 v{d+k}, v{t}, v{t+1}"]
        o.append(f"buffer_store_dwordx4 {R('v', d, 4)}, v{26+r}, s[12:15], s{(59,60,61)[s>>2]} offen offset:{(s & 3) * 1024} {CF['OST']} ;#OST")
    return o
def setup3():
    o = []; e = o.append
    for i in range(5):
        e(f"v_add_u32 v22, {64*i}, v0"); e("v_mul_u32_u24 v23, 3277, v22"); e("v_lshrrev_b32 v23, 16, v23")
        e("v_mul_u32_u24 v23, 960, v23"); e(f"v_lshl_add_u32 v{1+i}, v22, 4, v23")
    e("s_mul_i32 s47, s3, 5120"); e("s_mul_i32 s44, s4, 983040"); e("s_mul_i32 s63, s3, 20480"); e("s_add_u32 s44, s44, s63")
    e("s_lshr_b32 s46, s4, 1"); e("s_mul_i32 s46, s46, 491520"); e("s_add_u32 s46, s46, s63")
    e("s_mul_i32 s59, s7, 12288"); e("s_add_u32 s60, s59, 4096"); e("s_add_u32 s61, s59, 8192")
    e(f"s_mov_b32 s95, {FL}"); e("s_lshl_b32 s63, s2, 7"); e("s_add_u32 s63, s63, s95")
    e(["s_cmp_eq_u32 s3, 0", f"s_cselect_b32 s63, s63, {OOB}"])
    e(f"v_mov_b32 v28, {OOB}"); e("v_mov_b32 v29, s63"); e("v_cmp_eq_u32 vcc, 0, v0"); e("v_cndmask_b32 v28, v28, v29, vcc"); e("v_mov_b32 v29, 1")
    return o

def wpref():
    return ["s_lshr_b32 s63, s2, 3", "s_lshl_b32 s63, s63, 2", "s_add_u32 s63, s63, s3", "s_mul_i32 s62, s63, 7680", "s_mul_i32 s93, s4, 983040",
            "s_add_u32 s62, s62, s93", "v_lshlrev_b32 v22, 7, v0", "buffer_load_dword a241, v22, s[24:27], s62 offen",
            "s_mul_i32 s62, s63, 3840", "s_lshr_b32 s93, s4, 1", "s_mul_i32 s93, s93, 491520", "s_add_u32 s62, s62, s93",
            "v_and_b32 v23, 0xfff, v22", "buffer_load_dword a242, v23, s[28:31], s62 offen"]

def hbase():
    return ["s_and_b32 s63, s4, 1", "s_lshl_b32 s63, s63, 2", "s_add_u32 s63, s63, s3", "s_lshl_b32 s48, s6, 3", "s_add_u32 s48, s48, s63",
          f"s_mul_i32 s48, s48, {96*1024}", "s_lshr_b32 s62, s4, 1", "s_mul_i32 s93, s62, 24576", "s_add_u32 s48, s48, s93", f"s_add_u32 s48, s48, {HB}"]
def hpref():
    return hbase() + ["s_mul_i32 s93, s5, 6144", "s_add_u32 s93, s93, s48", "v_min_u32 v22, 47, v0", "v_lshlrev_b32 v22, 7, v22",
            "buffer_load_dword a243, v22, s[12:15], s93 offen sc1"]

def p2(cfg):
    o = stamp(cfg, 1)
    o += ["@waitvm K0", "s_barrier"]
    for r in range(2):
        for k in range(48):
            a = 64 + r * 96 + 2 * k
            o += [f"v_pk_mul_f32 v[{a}:{a+1}], v[{a}:{a+1}], s[52:53]", f"v_cvt_pk_bf16_f32 v{64+r*48+k}, v{a}, v{a+1}"]
    hep = []
    for tl in range(3):
        for u in range(2):
            d = 192 + (tl * 2 + u) * 4
            for k in range(4):
                a = 192 + tl * 16 + u * 8 + 2 * k; t = 18 + (k & 1) * 2
                hep += [f"v_accvgpr_read_b32 v{t}, a{a}", f"v_accvgpr_read_b32 v{t+1}, a{a+1}", f"v_max_f32 v{t}, 0, v{t}", f"v_max_f32 v{t+1}, 0, v{t+1}",
                        f"v_mul_f32 v{t}, v{t}, v{t}", f"v_mul_f32 v{t+1}, v{t+1}, v{t+1}", f"v_cvt_pk_bf16_f32 v{d+k}, v{t}, v{t+1}"]
            if tl < 2: hep.append(f"buffer_store_dwordx4 {R('v', d, 4)}, v{28+tl}, s[12:15], s94 offen offset:{u*1024} sc1 ;#HST")
            else: hep.append(f"buffer_store_dwordx4 {R('v', d, 4)}, v28, s[12:15], 0 offen offset:{2048+u*1024} sc1 ;#HST")
    o += [kread(0, s) for s in range(6)] + hep[:29]; hep = hep[29:]
    o += stamp(cfg, 2)
    for i in range(17):
        if i < 16:
            mf = []
            for s, r in qk_order():
                d = R('v', 160 + r * 16, 16)
                c = d if s else ('0' if i == 0 else R('v', NEGM + r * 16, 16))
                mf.append(f"{MF} {d}, {R('v', 224 + (s % 8) * 4, 4)}, {R('v', 64 + r * 48 + 4 * s, 4)}, {c}")
            S = Sched(mf)
            if i > 0: S.at(0, ["v_add_f32 v14, v14, v16", "v_add_f32 v15, v15, v17"])
            for s in range(6, 12): S.at(2 * (s - 6) + 1, kread(i, s))
            if i == 0: S.spread(hep, 0, 23)
            else: S.spread(flat([vread(i - 1, g, u) for g in range(6) for u in range(2)]), 0, 20)
            if i == 3: S.spread(setup3(), 1, 23)
            if i in (6, 8, 10): S.spread(bdma((i - 6) // 2), 2, 22)
            if i == 4 and cfg.get('pf', 1): S.spread(wpref(), 1, 22)
            if i == 9: S.spread(pollissue('H'), 4, 22)
            if i == 11:
                S.at(1, pollcheck('H'))
                if cfg.get('hpf', 1): S.spread(hpref(), 2, 22)
            o += S.lines()
        if i == 0:
            o += ["@waitvm K1 V0", "s_waitcnt lgkmcnt(0)", "s_barrier"] + flat(kvdma('K', 4) + kvdma('V', 3))
            o += [kread(1, s) for s in range(6)]
            for r in range(2):
                o += tmax(r, 22)
                for k in range(16): o += [f"v_sub_f32 v{160+r*16+k}, v{160+r*16+k}, v22", f"v_sub_f32 v{NEGM+r*16+k}, 0, v22"]
                o += smax(0, r) + [f"v_mov_b32 v{14+r}, 0"]
            continue
        mf = []
        for g in range(6):
            for u in range(2):
                for r in range(2):
                    d = R('a', (r * 6 + g) * 16, 16)
                    c = '0' if (i == 1 and u == 0) else d
                    mf.append(f"{MF} {d}, {R('a', 192 + (g * 2 + u) * 4, 4)}, {R('v', 192 + ((i - 1) & 1) * 16 + r * 8 + u * 4, 4)}, {c}")
        S = Sched(mf)
        if i < 16:
            S.at(0, [f"@waitvm K{i+1} V{i}" + (" HST" if i == 4 else ""), "s_waitcnt lgkmcnt(0)", "s_barrier"])
            if i == 4: S.at(0, flagstore(0))
            S.spread(smax(i, 0) + smax(i, 1), 0, 21)
            dm = (kvdma('K', i + 4) if i + 4 < 16 else []) + (kvdma('V', i + 3) if i + 3 < 16 else [])
            S.spread(dm, 1, 16)
            if i < 15: S.spread([kread(i + 1, s) for s in range(6)], 17, 22)
            else:
                for f in range(12): S.at(2 * f + 1, vread(15, f >> 1, f & 1))
            S.at(22, ["v_add_f32 v22, v16, v17", "v_cmp_nge_f32 vcc, s54, v22"])
            S.at(23, [f"s_cbranch_vccnz STUB{i}", f"RET{i}:"])
            SLOW.extend([f"STUB{i}:", f"s_mov_b32 s55, {i}", f"s_branch RARE{i&1}"])
        else:
            fin = []
            for r in range(2):
                fin += [f"v_add_f32 v{14+r}, v{14+r}, v{16+r}", f"v_mov_b32 v{16+r}, v{14+r}"]
            for r in range(2): fin += [f"v_permlane32_swap_b32 v{14+r}, v{16+r}"]
            for r in range(2): fin += [f"v_add_f32 v{14+r}, v{14+r}, v{16+r}"]
            for r in range(2): fin += [f"v_rcp_f32 v{14+r}, v{14+r}"]
            fin += ["v_add_u32 v8, 61440, v31", "v_add_u32 v9, 122880, v31"]
            S.spread(fin, 0, 3)
            S.at(4, ["@waitvm B2", "s_waitcnt lgkmcnt(0)", "s_barrier"])
            S.spread(flat([bread(0, 0, n, n) for n in range(5)] + [bread(0, 1, 0, 5)]), 5, 20)
            S.spread(oepi(0) + oepi(1), 6, 23)
        o += S.lines()
    return o + stamp(cfg, 3)

def cvtstore(c, a, tmp, voff, soff, imm, tag):
    o = []
    for k in range(4):
        if c == 'a':
            t = 18 + (k & 1) * 2
            o += [f"v_accvgpr_read_b32 v{t}, a{a+2*k}", f"v_accvgpr_read_b32 v{t+1}, a{a+2*k+1}", f"v_cvt_pk_bf16_f32 v{tmp+k}, v{t}, v{t+1}"]
        else: o += [f"v_cvt_pk_bf16_f32 v{tmp+k}, v{a+2*k}, v{a+2*k+1}"]
    o.append(f"buffer_store_dwordx4 {R('v', tmp, 4)}, v{voff}, s[12:15], {soff} offen offset:{imm} {CF[tag]} ;#{tag}")
    return o
US = ('0', 's56', 's57')
def oload(q, s):
    c, b = ('a', 96) if q == 2 else ('v', 64)
    pre = [f"s_add_u32 s59, s5, {q}", "s_and_b32 s59, s59, 3", "s_lshl_b32 s63, s4, 2", "s_add_u32 s59, s59, s63", "s_mul_i32 s59, s59, 12288",
           "s_add_u32 s60, s59, 4096", "s_add_u32 s61, s59, 8192"] if s == 0 else []
    return [pre + [f"buffer_load_dwordx4 {R(c, b + 4 * s, 4)}, v26, s[12:15], s{(59,60,61)[s>>2]} offen offset:{(s & 3) * 1024} sc1"],
            [f"buffer_load_dwordx4 {R(c, b + 48 + 4 * s, 4)}, v27, s[12:15], s{(59,60,61)[s>>2]} offen offset:{(s & 3) * 1024} sc1"]]

def p3(cfg):
    LA = 6
    fr = []
    for B in range(15):
        for st in range(4):
            for n in range(5): fr.append((B, st, n))
    for n in range(5):
        for s in range(12): fr.append((15 + s // 4, s % 4, n))
    mf = []; first = {}; fslot = []
    for f, (B, st, n) in enumerate(fr):
        w = R('v', 32 + (f % 8) * 4, 4); fslot.append(len(mf)); first.setdefault((B, st), len(mf))
        if 3 <= B < 9:
            s = (B - 3) * 4 + st; d = R('a', 16 * n, 16)
            mf.append(f"{MF} {d}, {w}, {R('a', 96 + 4 * s, 4)}, {'0' if s == 0 else d}")
        else:
            q = 0 if B < 3 else (B - 6) // 3; s = (B % 3) * 4 + st
            c, b = ('a', 96) if q == 2 else ('v', 64)
            for r in range(2):
                d = R(*acc(r, n), 16)
                mf.append(f"{MF} {d}, {w}, {R(c, b + r * 48 + 4 * s, 4)}, {'0' if (B, st) == (0, 0) else d}")
    S = Sched(mf); N = len(mf)
    bar = {}
    for B in range(3, 16):
        f0 = B * 20 - LA
        bar[B] = fslot[f0]
        w = f"@waitvm B{B}" if B < 15 else "@waitvm B15 B16 B17"
        if B == cfg.get('oflagB', 4): S.at(bar[B], [w + " OST", "s_barrier"] + flagstore(4))
        else: S.at(bar[B], [w, "s_barrier"])
    for f in range(len(fr) - LA):
        rd = bread(*fr[f + LA], (f + LA) % 8)
        if fslot[f] + 1 < N and (f + 1 == len(fr) or fslot[f + 1] > fslot[f] + 1): S.at(fslot[f], rd[0]); S.at(fslot[f] + 1, rd[1])
        else: S.at(fslot[f], rd)
    su = ["s_and_b32 s63, s4, 1", "s_lshl_b32 s63, s63, 2", "s_add_u32 s63, s63, s3", "s_lshl_b32 s48, s6, 3", "s_add_u32 s48, s48, s63",
          f"s_mul_i32 s48, s48, {96*1024}", "s_lshr_b32 s49, s4, 1", "s_mul_i32 s50, s49, 24576", "s_add_u32 s48, s48, s50", f"s_add_u32 s48, s48, {HB}",
          "s_lshr_b32 s50, s2, 3", f"s_mul_i32 s50, s50, {8*12*10240}", f"s_add_u32 s50, s50, {PB}",
          "s_mul_i32 s63, s63, 12", "s_add_u32 s63, s63, s49", "s_add_u32 s63, s63, 8", "s_mul_i32 s63, s63, 10240", "s_add_u32 s63, s63, s50", "v_add_u32 v10, s63, v30"]
    for r, sg in ((0, 91), (1, 92)):
        su += [f"s_and_b32 s63, s{sg}, 7", "s_mul_i32 s63, s63, 12", "s_add_u32 s63, s63, s4", "s_mul_i32 s63, s63, 10240", "s_add_u32 s63, s63, s50", f"v_add_u32 v{12+r}, s63, v30"]
    S.spread(su, 0, 9)
    for s in range(10): S.spread(oepi(s + 2), 10 * s, 10 * s + 9)
    S.spread(bdma(3) + bdma(4) + bdma(5) + bdma(6) + bdma(7), 0, 99)
    hl = []
    for s in range(24):
        hl.append([f"buffer_load_dwordx4 {R('a', 96 + 4 * s, 4)}, v30, s[12:15], s48 offen offset:{(s & 3) * 1024} sc1"] + (["s_add_u32 s48, s48, 4096"] if s & 3 == 3 else []))
    for s in range(24): S.at(max(10 + s, (s // 2 - 1) * 10 + (s & 1) * 5), hl[s])
    for B in range(8, 18):
        b0 = bar[B - 5] if B - 5 >= 4 else bar[4]
        ln = 18 if B - 5 < 9 else 36
        if B == 8: S.spread(bdma(B), bar[3] + 1, bar[4] - 1)
        else: S.spread(bdma(B), b0 + 1, b0 + ln)
    pc = first[(cfg.get('ochkB', 7), 0)]
    S.spread(pollissue('O'), pc - 16, pc - 12); S.at(pc, pollcheck('O'))
    q1 = first[(9, 0)]; q2 = first[(12, 0)]; q3 = first[(15, 0)]
    S.spread([x for s in range(12) for x in oload(1, s)], pc + 1, q1 + 20)
    fe = []
    for un in range(10): fe += cvtstore('a', un * 8, 22 if False else 14, 10, US[un >> 2], (un & 3) * 1024, 'FST')
    S.spread(fe, q1 + 4, q1 + 50)
    S.spread([x for s in range(12) for x in oload(2, s)], q1 + 24, q2 - 10)
    S.spread([x for s in range(12) for x in oload(3, s)], q2, q2 + 70)
    S.spread(final_pre(), q2 + 72, q3 - 2)
    tail = []
    for n in range(5):
        ep = []
        for r in range(2):
            c, a = acc(r, n)
            for u in range(2):
                un = 2 * n + u
                ep += cvtstore(c, a + 8 * u, a + 8 * u if c == 'v' else 14, 12 + r, US[un >> 2], (un & 3) * 1024, 'PST')
        if n < 4: S.spread(ep, q3 + 24 * (n + 1) + 3, q3 + 24 * (n + 2) - 1)
        else: tail = ep
    if cfg.get('ts'):
        S.at(119, stamp(cfg, 4)); S.at(q1 - 1, stamp(cfg, 5)); S.at(q2 - 1, stamp(cfg, 6)); S.at(q3 - 1, stamp(cfg, 7))
    return S.lines() + tail + stamp(cfg, 8)

def final_pre():
    o = []; e = o.append
    e("s_lshl_b32 s63, s6, 3"); e("s_add_u32 s63, s63, s4"); e("s_mul_i32 s63, s63, 40960"); e("s_mul_i32 s49, s5, 320"); e("s_lshl_b32 s51, s3, 5")
    e("s_add_u32 s49, s49, s51"); e("s_add_u32 s63, s63, s49")
    e("v_and_b32 v6, 31, v0"); e("v_mul_u32_u24 v6, 1280, v6"); e("v_lshrrev_b32 v11, 5, v0"); e("v_lshlrev_b32 v11, 4, v11")
    e("v_add3_u32 v6, v6, v11, s63"); e(["s_cmp_lt_u32 s3, 2", f"s_cselect_b32 s58, 0, {OOB}"]); e("v_add_u32 v7, s58, v6"); e("v_add_u32 v24, s58, v11")
    for k in range(3):
        e(f"buffer_load_dwordx4 {R('a', 4 * k, 4)}, v{7 if k == 2 else 6}, s[36:39], 0 offen offset:{128*k}")
        e(f"buffer_load_dwordx4 {R('a', 12 + 4 * k, 4)}, v{24 if k == 2 else 11}, s[96:99], s49 offen offset:{128*k}")
    e(f"s_mul_i32 s63, s4, {12*10240}"); e("s_add_u32 s50, s50, s63"); e("s_lshl_b32 s63, s3, 10"); e("s_add_u32 s50, s50, s63")
    e("v_add_u32 v11, s58, v30")
    return o

def final(cfg):
    o = ["@waitvm PST", "s_barrier"] + flagstore(8) + stamp(cfg, 9) + pollissue('P') + pollcheck('P') + stamp(cfg, 10)
    e = o.append
    for k in range(3):
        for src in range(12):
            e(f"s_add_u32 s63, s50, {src*10240 + k*4096}")
            e(f"buffer_load_dwordx4 {R('v', 64 + (k * 12 + src) * 4, 4)}, v{11 if k == 2 else 30}, s[12:15], s63 offen sc1")
    e(f"s_mov_b32 s52, {f32(-math.log2(math.e))}")
    for k in range(3):
        for i in range(4):
            e(f"v_accvgpr_read_b32 v18, a{12+4*k+i}"); e(f"v_lshlrev_b32 v{40+2*i}, 16, v18"); e(f"v_and_b32 v{41+2*i}, 0xffff0000, v18")
            e(f"v_accvgpr_read_b32 v18, a{4*k+i}"); e(f"v_lshlrev_b32 v{48+2*i}, 16, v18"); e(f"v_and_b32 v{49+2*i}, 0xffff0000, v18")
        for src in range(12):
            d = 32 if src < 8 else 40
            for i in range(4):
                s = 64 + (k * 12 + src) * 4 + i
                if src == 0: e(f"v_lshlrev_b32 v{d+2*i}, 16, v{s}"); e(f"v_and_b32 v{d+2*i+1}, 0xffff0000, v{s}")
                else:
                    e(f"v_lshlrev_b32 v18, 16, v{s}"); e(f"v_and_b32 v19, 0xffff0000, v{s}")
                    e(f"v_add_f32 v{d+2*i}, v{d+2*i}, v18"); e(f"v_add_f32 v{d+2*i+1}, v{d+2*i+1}, v19")
        for i in range(8): e(f"v_mul_f32 v{56+i}, s52, v{40+i}")
        for i in range(8): e(f"v_exp_f32 v{56+i}, v{56+i}")
        for i in range(8): e(f"v_add_f32 v{56+i}, 1.0, v{56+i}")
        for i in range(8): e(f"v_rcp_f32 v{56+i}, v{56+i}")
        for i in range(8): e(f"v_mul_f32 v{56+i}, v{56+i}, v{40+i}")
        for i in range(8): e(f"v_fma_f32 v{56+i}, v{56+i}, v{32+i}, v{48+i}")
        for i in range(4): e(f"v_cvt_pk_bf16_f32 v{20+i}, v{56+2*i}, v{57+2*i}")
        e(f"buffer_store_dwordx4 v[20:23], v{7 if k == 2 else 6}, s[40:43], 0 offen offset:{128*k}")
    if cfg.get('ts'):
        o += stamp(cfg, 11) + ["s_waitcnt vmcnt(0)", "s_memrealtime s[90:91]", "s_mov_b32 s88, s100", "s_waitcnt lgkmcnt(0)", "s_lshl_b32 s63, s2, 2", "s_add_u32 s63, s63, s3", "s_lshl_b32 s63, s63, 6", f"s_add_u32 s63, s63, {TS}", "v_mov_b32 v1, 0"]
        for i in range(14): o += [f"v_mov_b32 v2, s{64+2*i}", f"buffer_store_dword v2, v1, s[12:15], s63 offen offset:{4*i}"]
    return o + ["s_waitcnt vmcnt(0)"]

def kd(name, vg, ao):
    return [f".amdhsa_kernel {name}", f"  .amdhsa_next_free_vgpr {vg}", "  .amdhsa_next_free_sgpr 102", f"  .amdhsa_accum_offset {ao}",
            "  .amdhsa_group_segment_fixed_size 0", "  .amdhsa_kernarg_size 104", "  .amdhsa_user_sgpr_count 2",
            "  .amdhsa_user_sgpr_kernarg_segment_ptr 1", "  .amdhsa_system_sgpr_workgroup_id_x 1", ".end_amdhsa_kernel"]
def hdr(name): return [f".globl {name}", ".p2align 8", f".type {name},@function", f"{name}:"]

def build(cfg):
    SLOW.clear()
    CF.update(OST=MODES[cfg.get('osc', 0)], FST=MODES[cfg.get('psc', 0)], PST=MODES[cfg.get('psc', 0)])
    ref = open(f"cdna_kernels/{NAME}.s.ref").read().split("\n")
    L = [l for l in ref[:16]]
    L += ["; @launch kernel=ln_kernel grid=(256,1,1) block=(256,1,1) lds=256",
          f"; @launch kernel={NAME}_kernel grid=(256,1,1) block=(256,1,1) lds=163840",
          '.amdgcn_target "amdgcn-amd-amdhsa--gfx950"', ".text"]
    L += hdr("ln_kernel") + k0(cfg)
    body = prologue(cfg) + p1(cfg) + p2(cfg) + p3(cfg) + final(cfg)
    ab = cfg.get('ab', 0)
    def drop(x):
        if ab & 1 and ';#OST' in x: return True
        if ab & 2 and ';#FST' in x: return True
        if ab & 4 and ', v30, s[12:15], s48' in x: return True
        if ab & 8 and ('v26, s[12:15]' in x or 'v27, s[12:15]' in x) and 'load' in x: return True
        if ab & 16 and ';#PST' in x: return True
        return False
    L += hdr(NAME + "_kernel") + run([x for x in body if x and not drop(x)]) + ["K1END:", "s_endpgm"] + SLOW + rare(0) + rare(1)
    L += ['.section .rodata,"a"', ".p2align 6"] + kd("ln_kernel", 68, 68) + [".p2align 6"] + kd(NAME + "_kernel", 512, 256)
    return "\n".join(L) + "\n"

if __name__ == "__main__":
    cfg = dict(kv.split("=") for kv in sys.argv[2:])
    cfg = {k: int(v) for k, v in cfg.items()}
    open(sys.argv[1], "w").write(build(cfg))
```
